```python
import torch

def _softmax(x, axis=-1):
    return torch.softmax(x, dim=axis)
def _gelu(x):
    return torch.nn.functional.gelu(x, approximate="tanh")
def _silu(x):
    return torch.nn.functional.silu(x)
def _sigmoid(x):
    return torch.sigmoid(x)
def _layernorm(x, axis=-1, eps=1e-5):
    m = x.mean(dim=axis, keepdim=True)
    v = x.var(dim=axis, keepdim=True, unbiased=False)
    return (x - m) / torch.sqrt(v + eps)
def _scatter_add(tgt, idx, src, axis=0):
    return tgt.clone().index_add_(axis, idx, src)
def _segment_sum(src, seg, n):
    out = torch.zeros((n,) + src.shape[1:], dtype=src.dtype)
    return out.index_add_(0, seg, src)
def _pad(x, pw):
    flat = tuple(v for pair in reversed(pw) for v in pair)
    return torch.nn.functional.pad(x, flat)

kernel_name = 'standalone__weight_only_int_quip__prompt'

def setup_inputs():

    _w = (lambda a: (lambda t: t.to(torch.bfloat16) if t.is_floating_point() else t)(torch.as_tensor(a)))
    B, S, D, F = 1, 2048, 1024, 3584
    G = 128 if 128 > 0 else D
    D = (D // G) * G
    ng = D // G
    bits = 3 if 3 > 0 else 4
    qmax = 1 << bits
    qw = torch.randint(0, qmax, (D, F)).to(torch.int32)
    U, _ = (lambda *_a, **_k: torch.linalg.qr(*[torch.as_tensor(_x).float() for _x in _a], **_k))((lambda *s: torch.randn(*s, dtype=torch.bfloat16) * 0.05)(D, D))
    V, _ = (lambda *_a, **_k: torch.linalg.qr(*[torch.as_tensor(_x).float() for _x in _a], **_k))((lambda *s: torch.randn(*s, dtype=torch.bfloat16) * 0.05)(F, F))
    return {
        "x": _w((lambda *s: torch.randn(*s, dtype=torch.bfloat16) * 0.05)(B, S, D)),
        "qw": _w(qw),
        "scales": _w(torch.abs((lambda *s: torch.randn(*s, dtype=torch.bfloat16) * 0.05)(ng, F)) * 0.02 + 0.005),
        "zeros": _w(torch.full((ng, F), qmax / 2.0, dtype=float)),
        "U": _w(U.to(float)),
        "V": _w(V.to(float)),
    }

def reference(x, qw, scales, zeros, U, V):
    B, S, D = x.shape
    ng, F = scales.shape
    G = D // ng
    s = (lambda x, n, axis: torch.repeat_interleave(x, n, dim=axis))(scales, G, axis=0)
    z = (lambda x, n, axis: torch.repeat_interleave(x, n, dim=axis))(zeros, G, axis=0)
    wq = ((lambda x, dt: x.to(dt))(qw, x.dtype) - z) * s
    xr = torch.einsum("bsd,de->bse", x, U)
    h  = torch.einsum("bse,ef->bsf", xr, wq)
    y  = torch.einsum("bsf,fg->bsg", h, V)
    return y
```

```python
import sys

S_, D_, F_ = 2048, 1024, 3584
WQ_OFF = 0
W_OFF = 0x800000
XR_OFF = 0x1000000
ST_OFF = 0x2000000
WQ_BYTES = D_ * F_ * 2
W_BYTES = D_ * F_ * 2
XR_BYTES = S_ * D_ * 2
V_BYTES = F_ * F_ * 2
U_BYTES = D_ * D_ * 2
X_BYTES = S_ * D_ * 2
QW_BYTES = D_ * F_ * 4
SC_BYTES = 8 * F_ * 2
Y_BYTES = S_ * F_ * 2


class Asm:
    def __init__(self):
        self.l = []

    def __call__(self, s):
        self.l.append("    " + s)

    def lab(self, s):
        self.l.append(s + ":")

    def c(self, s):
        self.l.append("    ; " + s)

    def text(self):
        return "\n".join(self.l) + "\n"


def vr(b, n=1):
    return f"v{b}" if n == 1 else f"v[{b}:{b+n-1}]"


def ar(b, n=1):
    return f"a{b}" if n == 1 else f"a[{b}:{b+n-1}]"


def sr(b, n=1):
    return f"s{b}" if n == 1 else f"s[{b}:{b+n-1}]"


def kernel_head(a, name):
    a.l.append(f".globl {name}")
    a.l.append(".p2align 8")
    a.l.append(f".type {name},@function")
    a.lab(name)


def kernel_desc(name, vgpr, accum, sgpr=96):
    return f""".p2align 6
.amdhsa_kernel {name}
  .amdhsa_next_free_vgpr {vgpr}
  .amdhsa_next_free_sgpr {sgpr}
  .amdhsa_accum_offset {accum}
  .amdhsa_group_segment_fixed_size 0
  .amdhsa_kernarg_size 72
  .amdhsa_user_sgpr_count 2
  .amdhsa_user_sgpr_kernarg_segment_ptr 1
  .amdhsa_system_sgpr_workgroup_id_x 1
  .amdhsa_float_denorm_mode_32 3
  .amdhsa_float_denorm_mode_16_64 3
.end_amdhsa_kernel
"""


def srd(a, d, ptr, off, size):
    if off:
        a(f"s_add_u32 s{d}, s{ptr}, {hex(off)}")
        a(f"s_addc_u32 s{d+1}, s{ptr+1}, 0")
    else:
        a(f"s_mov_b32 s{d}, s{ptr}")
        a(f"s_mov_b32 s{d+1}, s{ptr+1}")
    a(f"s_mov_b32 s{d+2}, {hex(size)}")
    a(f"s_mov_b32 s{d+3}, 0x00020000")


def stamp(a, sreg, real=False):
    a(f"s_memrealtime s[{sreg}:{sreg+1}]" if real else f"s_memtime s[{sreg}:{sreg+1}]")


def stamps_out(a, sregs, ws_ptr, wg_sreg, tmp_srd, off=0):
    a("s_waitcnt lgkmcnt(0)")
    srd(a, tmp_srd, ws_ptr, ST_OFF + off, 0x100000)
    a("v_cmp_eq_u32 vcc, 0, v0")
    a("s_and_saveexec_b64 s[90:91], vcc")
    a("s_cbranch_execz L_nostamp%d" % off)
    a(f"s_lshl_b32 s92, s{wg_sreg}, 6")
    a("v_mov_b32 v1, s92")
    for i, s in enumerate(sregs):
        a(f"v_mov_b32 v2, s{s}")
        a(f"buffer_store_dword v2, v1, s[{tmp_srd}:{tmp_srd+3}], 0 offen offset:{4*i}")
        a("s_nop 0")
    a.lab("L_nostamp%d" % off)
    a("s_mov_b64 exec, s[90:91]")


def gen_gemm2(name="gemm2_kernel", D=6, R=8, diag=False, no_mfma=False, no_a=False, no_dma=False,
              no_ds=False, no_bar=False, xmap=(2, 4), amod="", bmod="", kind=2, stoff=0):
    a = Asm()
    kernel_head(a, name)
    g1 = kind == 1
    NS = (D_ if g1 else F_) // 64
    QP = (D_ if g1 else F_) * 2
    NWG = 128 if g1 else 224
    U = R
    assert NS % U == 0 and D <= R - 2 and 8 * D <= 63
    sV, sWS = 4, 6
    SRD_V, SRD_A, SRD_W = 8, 12, 16
    sW, sMT, sNT, sA, sB, sCNT, sW4 = 20, 21, 22, 23, 24, 25, 26
    vAoff = 8
    vBoff = 9
    vL = 16
    vBf = 32
    vAcc = 64
    vAr = 128
    a(f"s_cmp_ge_u32 s2, {NWG}")
    a("s_cbranch_scc1 L_end_" + name)
    a(f"s_load_dwordx2 s[{sV}:{sV+1}], s[0:1], {32 if g1 else 40}")
    a(f"s_load_dwordx2 s[{sWS}:{sWS+1}], s[0:1], 64")
    if g1:
        a("s_load_dwordx2 s[32:33], s[0:1], 0")
    if diag:
        stamp(a, 60, True)
        stamp(a, 62)
    a("v_lshrrev_b32 v1, 6, v0")
    a("v_and_b32 v2, 63, v0")
    a("s_and_b32 s27, s2, 7")
    a("v_readfirstlane_b32 s%d, v1" % sW)
    a("s_lshr_b32 s28, s2, 3")
    mx, nx = xmap
    mper, nper = (16 // mx, 8 // nx) if g1 else (8 // mx, 28 // nx)
    lg = {1: 0, 2: 1, 4: 2, 8: 3, 16: 4}
    a(f"s_and_b32 s29, s27, {mx-1}")
    a(f"s_lshl_b32 s29, s29, {lg[mper]}")
    a(f"s_and_b32 s30, s28, {mper-1}")
    a(f"s_add_u32 s{sMT}, s29, s30")
    a(f"s_lshr_b32 s29, s27, {lg[mx]}")
    a(f"s_mul_i32 s29, s29, {nper}")
    a(f"s_lshr_b32 s30, s28, {lg[mper]}")
    a(f"s_add_u32 s{sNT}, s29, s30")
    a(f"s_lshl_b32 s{sW4}, s{sW}, 12")
    a(f"s_lshl_b32 s29, s{sMT}, 2")
    a(f"s_add_u32 s29, s29, s{sW}")
    if g1:
        a("s_lshl_b32 s29, s29, 16")
        a("v_and_b32 v3, 31, v2")
        a("v_lshlrev_b32 v3, 11, v3")
        a("v_lshrrev_b32 v4, 5, v2")
        a("v_lshl_add_u32 v3, v4, 4, v3")
        a(f"v_add_u32 v{vAoff}, s29, v3")
    else:
        a(f"s_mul_i32 s29, s29, {224*1024}")
        a(f"v_lshlrev_b32 v{vAoff}, 4, v2")
        a(f"v_add_u32 v{vAoff}, s29, v{vAoff}")
    a("v_lshrrev_b32 v3, 4, v2")
    a("v_and_b32 v4, 15, v2")
    a("v_lshrrev_b32 v5, 2, v4")
    a("v_xor_b32 v5, v5, v3")
    a("v_lshlrev_b32 v5, 6, v5")
    a("v_and_b32 v4, 3, v4")
    a("v_lshlrev_b32 v4, 4, v4")
    a("v_add_u32 v5, v5, v4")
    a(f"s_mov_b32 s29, {QP}")
    a("v_mul_lo_u32 v3, v3, s29")
    a("v_add_u32 v5, v5, v3")
    a(f"s_mul_i32 s29, s{sW}, {16*QP}")
    a(f"s_lshl_b32 s30, s{sNT}, 8")
    a("s_add_u32 s29, s29, s30")
    for p in range(4):
        a(f"s_add_u32 s30, s29, {p*(4*QP-1024)}")
        a(f"v_add_u32 v{vBoff+p}, s30, v5")
    a("v_lshrrev_b32 v3, 5, v2")
    a(f"v_lshlrev_b32 v3, {3 if g1 else 2}, v3")
    a("v_bfe_u32 v4, v2, 2, 2")
    a("v_add_u32 v3, v3, v4")
    a("v_lshlrev_b32 v3, 8, v3")
    if g1:
        a("v_and_b32 v5, 3, v2")
        a("v_lshlrev_b32 v5, 3, v5")
        a("v_bfe_u32 v6, v2, 4, 1")
        a("v_lshlrev_b32 v6, 5, v6")
        a("v_add3_u32 v3, v3, v5, v6")
    else:
        a("v_and_b32 v5, 1, v2")
        a("v_lshlrev_b32 v5, 5, v5")
        a("v_bfe_u32 v6, v2, 4, 1")
        a("v_lshlrev_b32 v6, 4, v6")
        a("v_bfe_u32 v7, v2, 1, 1")
        a("v_lshlrev_b32 v7, 3, v7")
        a("v_add3_u32 v3, v3, v5, v6")
        a("v_add_u32 v3, v3, v7")
    for j in range(4):
        a(f"v_xor_b32 v5, {j}, v4")
        a(f"v_lshl_add_u32 v{vL+j}, v5, 6, v3")
        a(f"v_add_u32 v{vL+4+j}, 0x10000, v{vL+j}")
    for i in range(64):
        a(f"v_mov_b32 v{vAcc+i}, 0")
    a("s_waitcnt lgkmcnt(0)")
    if g1:
        srd(a, SRD_V, sV, 0, U_BYTES)
        srd(a, SRD_A, 32, 0, X_BYTES)
        srd(a, SRD_W, sWS, XR_OFF, XR_BYTES)
    else:
        srd(a, SRD_V, sV, 0, V_BYTES)
        srd(a, SRD_A, sWS, WQ_OFF, WQ_BYTES)
        srd(a, SRD_W, sWS, W_OFF, W_BYTES)
    a(f"s_mov_b32 s{sA}, 0")
    a(f"s_mov_b32 s{sB}, 0")

    def aload(slot, u):
        if no_a:
            return
        r = vAr + slot * 16 + u * 4
        a(f"buffer_load_dwordx4 v[{r}:{r+3}], v{vAoff}, s[{SRD_A}:{SRD_A+3}], s{sA} offen offset:{u*(32 if g1 else 1024)}{amod}")

    def dma(p):
        if no_dma:
            return
        a(f"buffer_load_dwordx4 v{vBoff+p}, s[{SRD_V}:{SRD_V+3}], s{sB} offen offset:{p*1024}{bmod} lds")

    def setm0(slot):
        a(f"s_add_u32 m0, s{sW4}, {slot*16384}")

    def adv():
        a(f"s_add_u32 s{sA}, s{sA}, {128 if g1 else 4096}")
        a(f"s_add_u32 s{sB}, s{sB}, {64*QP}")

    def dsread(slot, u, j, buf):
        if no_ds:
            return
        base = vL + j + (4 if slot >= 4 else 0)
        off = (slot & 3) * 16384 + u * (4096 if g1 else 2048)
        r = vBf + buf * 16 + j * 4
        a(f"ds_read_b64_tr_b16 v[{r}:{r+1}], v{base} offset:{off}")
        a(f"ds_read_b64_tr_b16 v[{r+2}:{r+3}], v{base} offset:{off+(1024 if g1 else 8192)}")

    per = (0 if no_a else 4) + (0 if no_dma else 4)
    per3 = (0 if no_a else 3) + (0 if no_dma else 3)

    for s in range(D):
        setm0(s % R)
        a("s_nop 0")
        for u in range(4):
            aload(s % R, u)
            dma(u)
        adv()
    a(f"s_waitcnt vmcnt({per*(D-1)})")
    a("s_barrier")
    if diag:
        stamp(a, 64)
    for j in range(4):
        dsread(0, 0, j, 0)

    def stage(s, abs_s=None):
        loads = abs_s is None or abs_s + D < NS
        last = abs_s is not None and abs_s == NS - 1
        tslot = (s + D) % R
        if loads:
            setm0(tslot)
        for u in range(4):
            buf = u & 1
            for j in range(4):
                if not no_ds:
                    if last and u == 3:
                        a(f"s_waitcnt lgkmcnt({2*(3-j)})")
                    else:
                        a("s_waitcnt lgkmcnt(6)")
                ra = vAr + s * 16 + u * 4
                rb = vBf + buf * 16 + j * 4
                rc = vAcc + j * 16
                if g1:
                    ra, rb = rb, ra
                if not no_mfma:
                    a(f"v_mfma_f32_32x32x16_bf16 v[{rc}:{rc+15}], v[{ra}:{ra+3}], v[{rb}:{rb+3}], v[{rc}:{rc+15}]")
                if u == 3 and j == 0 and not last:
                    if abs_s is None or abs_s + D < NS:
                        n = per * (D - 2) + per3
                    else:
                        n = per * max(0, NS - 1 - (abs_s + 1))
                    a(f"s_waitcnt vmcnt({n})")
                    if not no_bar:
                        a("s_barrier")
                if u < 3:
                    dsread(s, u + 1, j, buf ^ 1)
                elif not last:
                    dsread((s + 1) % R, 0, j, buf ^ 1)
                if loads and j == 2:
                    dma(u)
                if loads and j == 3:
                    aload(tslot, u)
        if loads:
            adv()

    nit = NS // U - 1
    a(f"s_mov_b32 s{sCNT}, {nit}")
    a(".p2align 6")
    a.lab("L_loop_" + name)
    for s in range(U):
        stage(s)
    a(f"s_sub_u32 s{sCNT}, s{sCNT}, 1")
    a(f"s_cmp_lg_u32 s{sCNT}, 0")
    a("s_cbranch_scc1 L_loop_" + name)
    for s in range(U):
        stage(s, NS - U + s)
    if diag:
        stamp(a, 66)
    a(f"s_lshl_b32 s29, s{sMT}, 2")
    a(f"s_add_u32 s29, s29, s{sW}")
    if g1:
        a("s_lshl_b32 s29, s29, 16")
        a(f"s_lshl_b32 s30, s{sNT}, 13")
    else:
        a("s_lshl_b32 s29, s29, 11")
        a(f"s_lshl_b32 s30, s{sNT}, 18")
    a("s_add_u32 s29, s29, s30")
    a("v_and_b32 v2, 63, v0")
    a("v_lshlrev_b32 v2, 4, v2")
    a("v_add_u32 v2, s29, v2")
    a("s_nop 7")
    a("s_nop 3")
    for j in range(4):
        for q in range(2):
            rc = vAcc + j * 16 + q * 8
            rd = vBf + (j * 2 + q) * 4
            for i in range(4):
                a(f"v_cvt_pk_bf16_f32 v{rd+i}, v{rc+2*i}, v{rc+2*i+1}")
            a(f"s_mov_b32 s30, {j*(2048 if g1 else 65536)}")
            a(f"buffer_store_dwordx4 v[{rd}:{rd+3}], v2, s[{SRD_W}:{SRD_W+3}], s30 offen offset:{q*1024}")
    if diag:
        a("s_waitcnt vmcnt(0)")
        stamp(a, 68)
        stamp(a, 70, True)
        stamps_out(a, [60, 62, 64, 66, 68, 70], sWS, 2, 72, stoff)
    a.lab("L_end_" + name)
    a("s_endpgm")
    return a.text(), kernel_desc(name, 256, 256)


class VM:
    def __init__(self, a):
        self.a = a
        self.ops = []

    def issue(self, tag, text):
        self.a(text)
        self.ops.append(tag)

    def wait(self, *tags):
        last = -1
        for i, t in enumerate(self.ops):
            if t in tags:
                last = i
        if last < 0:
            return
        n = len(self.ops) - 1 - last
        self.a(f"s_waitcnt vmcnt({min(n, 63)})")


def gen_deq(name="deq_kernel", diag=False, lmod="", smod="", stoff=0):
    a = Asm()
    kernel_head(a, name)
    a("s_cmp_ge_u32 s2, 224")
    a("s_cbranch_scc1 L_end_" + name)
    a("s_load_dwordx4 s[4:7], s[0:1], 8")
    a("s_load_dwordx2 s[8:9], s[0:1], 24")
    a("s_load_dwordx2 s[10:11], s[0:1], 64")
    if diag:
        stamp(a, 60, True)
        stamp(a, 62)
    a("v_lshrrev_b32 v1, 6, v0")
    a("v_and_b32 v2, 63, v0")
    a("s_and_b32 s28, s2, 7")
    a("v_readfirstlane_b32 s30, v1")
    a("s_lshr_b32 s29, s2, 3")
    a("v_lshrrev_b32 v3, 3, v2")
    a("v_and_b32 v4, 7, v2")
    a(f"s_mov_b32 s31, {F_*4}")
    a("v_mul_lo_u32 v5, v3, s31")
    a("v_lshl_add_u32 v5, v4, 4, v5")
    a("s_lshl_b32 s32, s28, 2")
    a("s_add_u32 s32, s32, s30")
    a(f"s_mul_i32 s33, s32, {32*F_*4}")
    a("s_lshl_b32 s34, s29, 9")
    a("s_add_u32 s33, s33, s34")
    a("v_lshlrev_b32 v6, 3, v4")
    a(f"s_mul_i32 s35, s28, {F_*2}")
    a("s_lshl_b32 s34, s29, 8")
    a("s_add_u32 s35, s35, s34")
    a("v_lshlrev_b32 v7, 9, v4")
    a("v_lshl_add_u32 v7, v3, 4, v7")
    a(f"s_mul_i32 s36, s32, {224*1024}")
    a("s_lshl_b32 s34, s29, 13")
    a("s_add_u32 s36, s36, s34")
    a("s_add_u32 s37, s36, 4096")
    a("s_waitcnt lgkmcnt(0)")
    srd(a, 12, 4, 0, QW_BYTES)
    srd(a, 16, 6, 0, SC_BYTES)
    srd(a, 20, 8, 0, SC_BYTES)
    srd(a, 24, 10, WQ_OFF, WQ_BYTES)
    vm = VM(a)
    vS, vZ, vQ = 16, 24, 64
    for half in range(2):
        for t in range(2):
            vm.issue("s", f"buffer_load_dwordx2 v[{vS+half*4+t*2}:{vS+half*4+t*2+1}], v6, s[16:19], s35 offen offset:{half*128+t*64}")
            vm.issue("s", f"buffer_load_dwordx2 v[{vZ+half*4+t*2}:{vZ+half*4+t*2+1}], v6, s[20:23], s35 offen offset:{half*128+t*64}")
    for rg in range(4):
        for half in range(2):
            for t in range(2):
                r = vQ + (rg * 2 + half) * 8 + t * 4
                vm.issue(f"q{rg}{half}", f"buffer_load_dwordx4 v[{r}:{r+3}], v5, s[12:15], s33 offen offset:{half*256+t*128}{lmod}")
        if rg < 3:
            a(f"s_add_u32 s33, s33, {8*F_*4}")
    vm.wait("s")
    a("s_mov_b32 s38, 0xffff0000")
    for half in range(2):
        for i in range(4):
            a(f"v_lshlrev_b32 v{32+half*8+2*i}, 16, v{vS+half*4+i}")
            a(f"v_and_b32 v{32+half*8+2*i+1}, s38, v{vS+half*4+i}")
            a(f"v_lshlrev_b32 v{48+half*8+2*i}, 16, v{vZ+half*4+i}")
            a(f"v_and_b32 v{48+half*8+2*i+1}, s38, v{vZ+half*4+i}")
    for rg in range(4):
        for half in range(2):
            r = vQ + (rg * 2 + half) * 8
            vm.wait(f"q{rg}{half}")
            for i in range(8):
                a(f"v_cvt_f32_i32 v{r+i}, v{r+i}")
            for i in range(4):
                a(f"v_cvt_pk_bf16_f32 v{8+i}, v{r+2*i}, v{r+2*i+1}")
            for i in range(4):
                a(f"v_lshlrev_b32 v{r+2*i}, 16, v{8+i}")
                a(f"v_and_b32 v{r+2*i+1}, s38, v{8+i}")
            for i in range(8):
                a(f"v_sub_f32 v{r+i}, v{r+i}, v{48+half*8+i}")
            for i in range(4):
                a(f"v_cvt_pk_bf16_f32 v{8+i}, v{r+2*i}, v{r+2*i+1}")
            for i in range(4):
                a(f"v_lshlrev_b32 v{r+2*i}, 16, v{8+i}")
                a(f"v_and_b32 v{r+2*i+1}, s38, v{8+i}")
            for i in range(8):
                a(f"v_mul_f32 v{r+i}, v{r+i}, v{32+half*8+i}")
            for i in range(4):
                a(f"v_cvt_pk_bf16_f32 v{r+i}, v{r+2*i}, v{r+2*i+1}")
            vm.issue("st", f"buffer_store_dwordx4 v[{r}:{r+3}], v7, s[24:27], s{36+half} offen offset:{rg*128}{smod}")
    if diag:
        stamp(a, 64)
        stamp(a, 66)
        a("s_waitcnt vmcnt(0)")
        stamp(a, 68)
        stamp(a, 70, True)
        stamps_out(a, [60, 62, 64, 66, 68, 70], 10, 2, 72, stoff)
    a.lab("L_end_" + name)
    a("s_endpgm")
    return a.text(), kernel_desc(name, 128, 128)


def gen_gemm3(name="gemm3_kernel", D=3, R=6, diag=False, xmap=(2, 4), smod="", stoff=0, LA=5):
    a = Asm()
    kernel_head(a, name)
    assert D <= R - 2
    a("s_cmp_ge_u32 s2, 256")
    a("s_cbranch_scc1 L_end_" + name)
    a("s_load_dwordx2 s[4:5], s[0:1], 48")
    a("s_load_dwordx2 s[6:7], s[0:1], 64")
    if diag:
        stamp(a, 60, True)
        stamp(a, 62)
    sW, sST, sNR, sW4, sB, sY = 20, 21, 22, 23, 24, 25
    a("v_lshrrev_b32 v1, 6, v0")
    a("v_and_b32 v2, 63, v0")
    a("s_and_b32 s27, s2, 7")
    a(f"v_readfirstlane_b32 s{sW}, v1")
    a("s_lshr_b32 s28, s2, 3")
    mx, nx = xmap
    mper, nper = 16 // mx, 16 // nx
    lg = {1: 0, 2: 1, 4: 2, 8: 3, 16: 4}
    a(f"s_and_b32 s29, s27, {mx-1}")
    a(f"s_lshl_b32 s29, s29, {lg[mper]}")
    a(f"s_and_b32 s30, s28, {mper-1}")
    a(f"s_add_u32 s{sST}, s29, s30")
    a(f"s_lshr_b32 s29, s27, {lg[mx]}")
    a(f"s_lshl_b32 s29, s29, {lg[nper]}")
    a(f"s_lshr_b32 s30, s28, {lg[mper]}")
    a(f"s_add_u32 s{sNR}, s29, s30")
    a(f"s_lshl_b32 s{sW4}, s{sW}, 12")
    vX, vB, vL, vL2, vY = 8, 9, 10, 11, 12
    vF, vAcc, vO = 32, 64, 96
    a(f"v_lshlrev_b32 v{vL}, 4, v2")
    a(f"v_add_u32 v{vL2}, 0x10000, v{vL}")
    a(f"s_lshl_b32 s29, s{sST}, 2")
    a(f"s_add_u32 s29, s29, s{sW}")
    a("s_lshl_b32 s30, s29, 16")
    a(f"v_add_u32 v{vX}, s30, v{vL}")
    a(f"s_mul_i32 s30, s{sNR}, {7*65536}")
    a(f"s_add_u32 s30, s30, s{sW4}")
    a(f"v_add_u32 v{vB}, s30, v{vL}")
    a("v_and_b32 v3, 31, v2")
    a(f"s_mov_b32 s31, {F_*2}")
    a("v_mul_lo_u32 v3, v3, s31")
    a("v_lshrrev_b32 v4, 5, v2")
    a(f"v_lshl_add_u32 v{vY}, v4, 5, v3")
    a(f"s_mul_i32 s{sY}, s29, {32*F_*2}")
    a(f"s_mul_i32 s30, s{sNR}, 448")
    a(f"s_add_u32 s{sY}, s{sY}, s30")
    a("s_waitcnt lgkmcnt(0)")
    srd(a, 8, 6, W_OFF, W_BYTES)
    srd(a, 12, 6, XR_OFF, XR_BYTES)
    srd(a, 16, 4, 0, Y_BYTES)
    vm = VM(a)
    NS = 28

    def dma(t, p):
        if p == 0:
            a(f"s_add_u32 m0, s{sW4}, {(t % R)*16384}")
            a(f"s_mov_b32 s{sB}, {t*16384}")
        vm.issue(f"d{t}", f"buffer_load_dwordx4 v{vB}, s[8:11], s{sB} offen offset:{p*1024} lds")

    def xload(ks):
        if ks % 4 == 0:
            a(f"s_mov_b32 s26, {ks*1024}")
        vm.issue(f"x{ks//16}", f"buffer_load_dwordx4 a[{4*ks}:{4*ks+3}], v{vX}, s[12:15], s26 offen offset:{(ks%4)*1024}")

    NF = 8

    def dsread(g):
        t, m = divmod(g, 16)
        slot = t % R
        base = vL2 if slot >= 4 else vL
        r = vF + (g % NF) * 4
        a(f"ds_read_b128 v[{r}:{r+3}], v{base} offset:{(slot&3)*16384 + m*1024}")

    for t in range(3):
        for p in range(4):
            dma(t, p)
        for ks in range(16 * t, 16 * t + 16):
            xload(ks)
    vm.wait("d0", "x0")
    a("s_barrier")
    if diag:
        stamp(a, 64)
    for g in range(LA):
        dsread(g)
    NG = NS * 16
    pend = []
    for g in range(NG):
        t, m = divmod(g, 16)
        b = t // 4
        ks = g % 64
        acc = vAcc + (b & 1) * 16
        nl = min(LA - 1, NG - 1 - g)
        a(f"s_waitcnt lgkmcnt({nl})")
        r = vF + (g % NF) * 4
        src = "0" if ks == 0 else f"v[{acc}:{acc+15}]"
        a(f"v_mfma_f32_32x32x16_bf16 v[{acc}:{acc+15}], v[{r}:{r+3}], a[{4*ks}:{4*ks+3}], {src}")
        if m == 16 - LA and t + 1 < NS:
            tags = [f"d{t+1}"] + ([f"x{t+1}"] if t + 1 < 4 else [])
            vm.wait(*tags)
            a("s_barrier")
        if g + LA < NG:
            dsread(g + LA)
        if t == 0:
            if m < 4:
                dma(3, m)
            if m >= 4 and m < 12:
                xload(48 + 2 * (m - 4))
                xload(48 + 2 * (m - 4) + 1)
        elif t + 3 < NS and m in (1, 4, 7, 10):
            dma(t + 3, (m - 1) // 3)
        if b > 0 and t % 4 == 0:
            pacc = vAcc + ((b - 1) & 1) * 16
            if m in (4, 5, 6, 7):
                i = m - 4
                a(f"v_cvt_pk_bf16_f32 v{vO+2*i}, v{pacc+4*i}, v{pacc+4*i+1}")
                a(f"v_cvt_pk_bf16_f32 v{vO+2*i+1}, v{pacc+4*i+2}, v{pacc+4*i+3}")
            if m == 8:
                vm.issue("st", f"buffer_store_dwordx4 v[{vO}:{vO+3}], v{vY}, s[16:19], s{sY} offen offset:{(b-1)*64}{smod}")
            if m == 9:
                vm.issue("st", f"buffer_store_dwordx4 v[{vO+4}:{vO+7}], v{vY}, s[16:19], s{sY} offen offset:{(b-1)*64+16}{smod}")
    if diag:
        stamp(a, 66)
    a("s_nop 7")
    a("s_nop 7")
    pacc = vAcc + (6 & 1) * 16
    for i in range(4):
        a(f"v_cvt_pk_bf16_f32 v{vO+2*i}, v{pacc+4*i}, v{pacc+4*i+1}")
        a(f"v_cvt_pk_bf16_f32 v{vO+2*i+1}, v{pacc+4*i+2}, v{pacc+4*i+3}")
    vm.issue("st", f"buffer_store_dwordx4 v[{vO}:{vO+3}], v{vY}, s[16:19], s{sY} offen offset:{6*64}{smod}")
    vm.issue("st", f"buffer_store_dwordx4 v[{vO+4}:{vO+7}], v{vY}, s[16:19], s{sY} offen offset:{6*64+16}{smod}")
    if diag:
        a("s_waitcnt vmcnt(0)")
        stamp(a, 68)
        stamp(a, 70, True)
        stamps_out(a, [60, 62, 64, 66, 68, 70], 6, 2, 72, stoff)
    a.lab("L_end_" + name)
    a("s_endpgm")
    return a.text(), kernel_desc(name, 512, 256)


def full4(diag=False, **kw):
    ks = [gen_deq(diag=diag, stoff=0, **kw.get("deq", {})),
          gen_gemm2(name="gemm1_kernel", kind=1, diag=diag, stoff=0x10000, xmap=(4, 2), **kw.get("g1", {})),
          gen_gemm2(diag=diag, stoff=0x20000, **kw.get("g2", {})),
          gen_gemm3(diag=diag, stoff=0x30000, **kw.get("g3", {}))]
    return wrap([("deq_kernel", 224, 256, 0), ("gemm1_kernel", 128, 256, 131072),
                 ("gemm2_kernel", 224, 256, 131072), ("gemm3_kernel", 256, 256, 6 * 16384)], ks)


def wrap(launches, kernels):
    out = []
    for n, g, b, l in launches:
        out.append(f"; @launch kernel={n} grid=({g},1,1) block=({b},1,1) lds={l}")
    out.append('.amdgcn_target "amdgcn-amd-amdhsa--gfx950"')
    out.append(".text")
    for t, d in kernels:
        out.append(t)
    out.append('.section .rodata,"a"')
    for t, d in kernels:
        out.append(d)
    return "\n".join(out)


if __name__ == "__main__":
    print(full4())
```

```python
import sys

S_, D_, F_ = 2048, 1024, 3584
WQ_OFF = 0
W_OFF = 0x800000
XR_OFF = 0x1000000
ST_OFF = 0x2000000
WQ_BYTES = D_ * F_ * 2
W_BYTES = D_ * F_ * 2
XR_BYTES = S_ * D_ * 2
V_BYTES = F_ * F_ * 2
U_BYTES = D_ * D_ * 2
X_BYTES = S_ * D_ * 2
QW_BYTES = D_ * F_ * 4
SC_BYTES = 8 * F_ * 2
Y_BYTES = S_ * F_ * 2


class Asm:
    def __init__(self):
        self.l = []

    def __call__(self, s):
        self.l.append("    " + s)

    def lab(self, s):
        self.l.append(s + ":")

    def c(self, s):
        self.l.append("    ; " + s)

    def text(self):
        return "\n".join(self.l) + "\n"


def vr(b, n=1):
    return f"v{b}" if n == 1 else f"v[{b}:{b+n-1}]"


def ar(b, n=1):
    return f"a{b}" if n == 1 else f"a[{b}:{b+n-1}]"


def sr(b, n=1):
    return f"s{b}" if n == 1 else f"s[{b}:{b+n-1}]"


def kernel_head(a, name):
    a.l.append(f".globl {name}")
    a.l.append(".p2align 8")
    a.l.append(f".type {name},@function")
    a.lab(name)


def kernel_desc(name, vgpr, accum, sgpr=96):
    return f""".p2align 6
.amdhsa_kernel {name}
  .amdhsa_next_free_vgpr {vgpr}
  .amdhsa_next_free_sgpr {sgpr}
  .amdhsa_accum_offset {accum}
  .amdhsa_group_segment_fixed_size 0
  .amdhsa_kernarg_size 72
  .amdhsa_user_sgpr_count 2
  .amdhsa_user_sgpr_kernarg_segment_ptr 1
  .amdhsa_system_sgpr_workgroup_id_x 1
  .amdhsa_float_denorm_mode_32 3
  .amdhsa_float_denorm_mode_16_64 3
.end_amdhsa_kernel
"""


def srd(a, d, ptr, off, size):
    if off:
        a(f"s_add_u32 s{d}, s{ptr}, {hex(off)}")
        a(f"s_addc_u32 s{d+1}, s{ptr+1}, 0")
    else:
        a(f"s_mov_b32 s{d}, s{ptr}")
        a(f"s_mov_b32 s{d+1}, s{ptr+1}")
    a(f"s_mov_b32 s{d+2}, {hex(size)}")
    a(f"s_mov_b32 s{d+3}, 0x00020000")


def stamp(a, sreg, real=False):
    a(f"s_memrealtime s[{sreg}:{sreg+1}]" if real else f"s_memtime s[{sreg}:{sreg+1}]")


def stamps_out(a, sregs, ws_ptr, wg_sreg, tmp_srd, off=0):
    a("s_waitcnt lgkmcnt(0)")
    srd(a, tmp_srd, ws_ptr, ST_OFF + off, 0x100000)
    a("v_cmp_eq_u32 vcc, 0, v0")
    a("s_and_saveexec_b64 s[90:91], vcc")
    a("s_cbranch_execz L_nostamp%d" % off)
    a(f"s_lshl_b32 s92, s{wg_sreg}, 6")
    a("v_mov_b32 v1, s92")
    for i, s in enumerate(sregs):
        a(f"v_mov_b32 v2, s{s}")
        a(f"buffer_store_dword v2, v1, s[{tmp_srd}:{tmp_srd+3}], 0 offen offset:{4*i}")
        a("s_nop 0")
    a.lab("L_nostamp%d" % off)
    a("s_mov_b64 exec, s[90:91]")


def gen_gemm2(name="gemm2_kernel", D=6, R=8, diag=False, no_mfma=False, no_a=False, no_dma=False,
              no_ds=False, no_bar=False, xmap=(2, 4), amod="", bmod="", kind=2, stoff=0, rot=None):
    a = Asm()
    kernel_head(a, name)
    g1 = kind == 1
    NS = (D_ if g1 else F_) // 64
    QP = (D_ if g1 else F_) * 2
    NWG = 128 if g1 else 224
    U = R
    assert NS % U == 0 and D <= R - 2 and 8 * D <= 63
    sV, sWS = 4, 6
    SRD_V, SRD_A, SRD_W = 8, 12, 16
    sW, sMT, sNT, sA, sB, sCNT, sW4 = 20, 21, 22, 23, 24, 25, 26
    vAoff = 8
    vBoff = 9
    vL = 16
    vBf = 32
    vAcc = 64
    vAr = 128
    a(f"s_cmp_ge_u32 s2, {NWG}")
    a("s_cbranch_scc1 L_end_" + name)
    a(f"s_load_dwordx2 s[{sV}:{sV+1}], s[0:1], {32 if g1 else 40}")
    a(f"s_load_dwordx2 s[{sWS}:{sWS+1}], s[0:1], 64")
    if g1:
        a("s_load_dwordx2 s[32:33], s[0:1], 0")
    if diag:
        stamp(a, 60, True)
        stamp(a, 62)
    a("v_lshrrev_b32 v1, 6, v0")
    a("v_and_b32 v2, 63, v0")
    a("s_and_b32 s27, s2, 7")
    a("v_readfirstlane_b32 s%d, v1" % sW)
    a("s_lshr_b32 s28, s2, 3")
    lg = {1: 0, 2: 1, 4: 2, 8: 3, 16: 4}
    if xmap == "lin":
        a("s_mul_i32 s29, s27, 28")
        a("s_add_u32 s29, s29, s28")
        a(f"s_and_b32 s{sMT}, s29, 7")
        a(f"s_lshr_b32 s{sNT}, s29, 3")
    else:
        mx, nx = xmap
        mper, nper = (16 // mx, 8 // nx) if g1 else (8 // mx, 28 // nx)
        a(f"s_and_b32 s29, s27, {mx-1}")
        a(f"s_lshl_b32 s29, s29, {lg[mper]}")
        a(f"s_and_b32 s30, s28, {mper-1}")
        a(f"s_add_u32 s{sMT}, s29, s30")
        a(f"s_lshr_b32 s29, s27, {lg[mx]}")
        a(f"s_mul_i32 s29, s29, {nper}")
        a(f"s_lshr_b32 s30, s28, {lg[mper]}")
        a(f"s_add_u32 s{sNT}, s29, s30")
    sRho, sSeq = 34, 35
    if rot:
        cm, cn, P = rot[:3]
        a(f"s_mul_i32 s{sRho}, s{sMT}, {cm}")
        a(f"s_mul_i32 s29, s{sNT}, {cn}")
        a(f"s_add_u32 s{sRho}, s{sRho}, s29")
        a(f"s_mov_b32 s{sSeq}, 0")
    a(f"s_lshl_b32 s{sW4}, s{sW}, 12")
    a(f"s_lshl_b32 s29, s{sMT}, 2")
    a(f"s_add_u32 s29, s29, s{sW}")
    if g1:
        a("s_lshl_b32 s29, s29, 16")
        a("v_and_b32 v3, 31, v2")
        a("v_lshlrev_b32 v3, 11, v3")
        a("v_lshrrev_b32 v4, 5, v2")
        a("v_lshl_add_u32 v3, v4, 4, v3")
        a(f"v_add_u32 v{vAoff}, s29, v3")
    else:
        a(f"s_mul_i32 s29, s29, {224*1024}")
        a(f"v_lshlrev_b32 v{vAoff}, 4, v2")
        a(f"v_add_u32 v{vAoff}, s29, v{vAoff}")
    a("v_lshrrev_b32 v3, 4, v2")
    a("v_and_b32 v4, 15, v2")
    a("v_lshrrev_b32 v5, 2, v4")
    a("v_xor_b32 v5, v5, v3")
    a("v_lshlrev_b32 v5, 6, v5")
    a("v_and_b32 v4, 3, v4")
    a("v_lshlrev_b32 v4, 4, v4")
    a("v_add_u32 v5, v5, v4")
    a(f"s_mov_b32 s29, {QP}")
    a("v_mul_lo_u32 v3, v3, s29")
    a("v_add_u32 v5, v5, v3")
    a(f"s_mul_i32 s29, s{sW}, {16*QP}")
    a(f"s_lshl_b32 s30, s{sNT}, 8")
    a("s_add_u32 s29, s29, s30")
    for p in range(4):
        a(f"s_add_u32 s30, s29, {p*(4*QP-1024)}")
        a(f"v_add_u32 v{vBoff+p}, s30, v5")
    a("v_lshrrev_b32 v3, 5, v2")
    a(f"v_lshlrev_b32 v3, {3 if g1 else 2}, v3")
    a("v_bfe_u32 v4, v2, 2, 2")
    a("v_add_u32 v3, v3, v4")
    a("v_lshlrev_b32 v3, 8, v3")
    if g1:
        a("v_and_b32 v5, 3, v2")
        a("v_lshlrev_b32 v5, 3, v5")
        a("v_bfe_u32 v6, v2, 4, 1")
        a("v_lshlrev_b32 v6, 5, v6")
        a("v_add3_u32 v3, v3, v5, v6")
    else:
        a("v_and_b32 v5, 1, v2")
        a("v_lshlrev_b32 v5, 5, v5")
        a("v_bfe_u32 v6, v2, 4, 1")
        a("v_lshlrev_b32 v6, 4, v6")
        a("v_bfe_u32 v7, v2, 1, 1")
        a("v_lshlrev_b32 v7, 3, v7")
        a("v_add3_u32 v3, v3, v5, v6")
        a("v_add_u32 v3, v3, v7")
    for j in range(4):
        a(f"v_xor_b32 v5, {j}, v4")
        a(f"v_lshl_add_u32 v{vL+j}, v5, 6, v3")
        a(f"v_add_u32 v{vL+4+j}, 0x10000, v{vL+j}")
    for i in range(64):
        a(f"v_mov_b32 v{vAcc+i}, 0")
    a("s_waitcnt lgkmcnt(0)")
    if g1:
        srd(a, SRD_V, sV, 0, U_BYTES)
        srd(a, SRD_A, 32, 0, X_BYTES)
        srd(a, SRD_W, sWS, XR_OFF, XR_BYTES)
    else:
        srd(a, SRD_V, sV, 0, V_BYTES)
        srd(a, SRD_A, sWS, WQ_OFF, WQ_BYTES)
        srd(a, SRD_W, sWS, W_OFF, W_BYTES)
    def setoffs():
        cm, cn, P = rot[:3]
        if len(rot) == 4:
            c = rot[3]
            a(f"s_sub_u32 s29, s{sRho}, s{sSeq}")
            a(f"s_and_b32 s29, s29, {P-1}")
            a(f"s_cmp_lt_u32 s29, {c}")
            a(f"s_cselect_b32 s30, {NS-1}, 0")
            a(f"s_cmp_eq_u32 s29, {c}")
            a(f"s_cselect_b32 s30, {c}, s30")
            a(f"s_add_u32 s29, s{sSeq}, s30")
            a(f"s_sub_u32 s30, s29, {NS}")
            a(f"s_cmp_ge_u32 s29, {NS}")
            a("s_cselect_b32 s29, s30, s29")
        else:
            a(f"s_add_u32 s29, s{sSeq}, s{sRho}")
            a(f"s_and_b32 s29, s29, {P-1}")
            a(f"s_andn2_b32 s30, s{sSeq}, {P-1}")
            a("s_add_u32 s29, s29, s30")
        a(f"s_mul_i32 s{sA}, s29, {128 if g1 else 4096}")
        a(f"s_mul_i32 s{sB}, s29, {64*QP}")
    if rot:
        setoffs()
    else:
        a(f"s_mov_b32 s{sA}, 0")
        a(f"s_mov_b32 s{sB}, 0")

    def aload(slot, u):
        if no_a:
            return
        r = vAr + slot * 16 + u * 4
        a(f"buffer_load_dwordx4 v[{r}:{r+3}], v{vAoff}, s[{SRD_A}:{SRD_A+3}], s{sA} offen offset:{u*(32 if g1 else 1024)}{amod}")

    def dma(p):
        if no_dma:
            return
        a(f"buffer_load_dwordx4 v{vBoff+p}, s[{SRD_V}:{SRD_V+3}], s{sB} offen offset:{p*1024}{bmod} lds")

    def setm0(slot):
        a(f"s_add_u32 m0, s{sW4}, {slot*16384}")

    def adv():
        if rot:
            a(f"s_add_u32 s{sSeq}, s{sSeq}, 1")
            setoffs()
            return
        a(f"s_add_u32 s{sA}, s{sA}, {128 if g1 else 4096}")
        a(f"s_add_u32 s{sB}, s{sB}, {64*QP}")

    def dsread(slot, u, j, buf):
        if no_ds:
            return
        base = vL + j + (4 if slot >= 4 else 0)
        off = (slot & 3) * 16384 + u * (4096 if g1 else 2048)
        r = vBf + buf * 16 + j * 4
        a(f"ds_read_b64_tr_b16 v[{r}:{r+1}], v{base} offset:{off}")
        a(f"ds_read_b64_tr_b16 v[{r+2}:{r+3}], v{base} offset:{off+(1024 if g1 else 8192)}")

    per = (0 if no_a else 4) + (0 if no_dma else 4)
    per3 = (0 if no_a else 3) + (0 if no_dma else 3)

    for s in range(D):
        setm0(s % R)
        a("s_nop 0")
        for u in range(4):
            aload(s % R, u)
            dma(u)
        adv()
    a(f"s_waitcnt vmcnt({per*(D-1)})")
    a("s_barrier")
    if diag:
        stamp(a, 64)
    for j in range(4):
        dsread(0, 0, j, 0)

    def stage(s, abs_s=None):
        loads = abs_s is None or abs_s + D < NS
        last = abs_s is not None and abs_s == NS - 1
        tslot = (s + D) % R
        if loads:
            setm0(tslot)
        for u in range(4):
            buf = u & 1
            for j in range(4):
                if not no_ds:
                    if last and u == 3:
                        a(f"s_waitcnt lgkmcnt({2*(3-j)})")
                    else:
                        a("s_waitcnt lgkmcnt(6)")
                ra = vAr + s * 16 + u * 4
                rb = vBf + buf * 16 + j * 4
                rc = vAcc + j * 16
                if g1:
                    ra, rb = rb, ra
                if not no_mfma:
                    a(f"v_mfma_f32_32x32x16_bf16 v[{rc}:{rc+15}], v[{ra}:{ra+3}], v[{rb}:{rb+3}], v[{rc}:{rc+15}]")
                if u == 3 and j == 0 and not last:
                    if abs_s is None or abs_s + D < NS:
                        n = per * (D - 2) + per3
                    else:
                        n = per * max(0, NS - 1 - (abs_s + 1))
                    a(f"s_waitcnt vmcnt({n})")
                    if not no_bar:
                        a("s_barrier")
                if u < 3:
                    dsread(s, u + 1, j, buf ^ 1)
                elif not last:
                    dsread((s + 1) % R, 0, j, buf ^ 1)
                if loads and j == 2:
                    dma(u)
                if loads and j == 3:
                    aload(tslot, u)
        if loads:
            adv()

    nit = NS // U - 1
    a(f"s_mov_b32 s{sCNT}, {nit}")
    a(".p2align 6")
    a.lab("L_loop_" + name)
    for s in range(U):
        stage(s)
    a(f"s_sub_u32 s{sCNT}, s{sCNT}, 1")
    a(f"s_cmp_lg_u32 s{sCNT}, 0")
    a("s_cbranch_scc1 L_loop_" + name)
    for s in range(U):
        stage(s, NS - U + s)
    if diag:
        stamp(a, 66)
    a(f"s_lshl_b32 s29, s{sMT}, 2")
    a(f"s_add_u32 s29, s29, s{sW}")
    if g1:
        a("s_lshl_b32 s29, s29, 16")
        a(f"s_lshl_b32 s30, s{sNT}, 13")
    else:
        a("s_lshl_b32 s29, s29, 11")
        a(f"s_lshl_b32 s30, s{sNT}, 18")
    a("s_add_u32 s29, s29, s30")
    a("v_and_b32 v2, 63, v0")
    a("v_lshlrev_b32 v2, 4, v2")
    a("v_add_u32 v2, s29, v2")
    a("s_nop 7")
    a("s_nop 3")
    for j in range(4):
        for q in range(2):
            rc = vAcc + j * 16 + q * 8
            rd = vBf + (j * 2 + q) * 4
            for i in range(4):
                a(f"v_cvt_pk_bf16_f32 v{rd+i}, v{rc+2*i}, v{rc+2*i+1}")
            a(f"s_mov_b32 s30, {j*(2048 if g1 else 65536)}")
            a(f"buffer_store_dwordx4 v[{rd}:{rd+3}], v2, s[{SRD_W}:{SRD_W+3}], s30 offen offset:{q*1024}")
    if diag:
        a("s_waitcnt vmcnt(0)")
        stamp(a, 68)
        stamp(a, 70, True)
        stamps_out(a, [60, 62, 64, 66, 68, 70], sWS, 2, 72, stoff)
    a.lab("L_end_" + name)
    a("s_endpgm")
    return a.text(), kernel_desc(name, 256, 256)


class VM:
    def __init__(self, a):
        self.a = a
        self.ops = []

    def issue(self, tag, text):
        self.a(text)
        self.ops.append(tag)

    def wait(self, *tags):
        last = -1
        for i, t in enumerate(self.ops):
            if t in tags:
                last = i
        if last < 0:
            return
        n = len(self.ops) - 1 - last
        self.a(f"s_waitcnt vmcnt({min(n, 63)})")


def gen_deq(name="deq_kernel", diag=False, lmod="", smod="", stoff=0):
    a = Asm()
    kernel_head(a, name)
    a("s_cmp_ge_u32 s2, 224")
    a("s_cbranch_scc1 L_end_" + name)
    a("s_load_dwordx4 s[4:7], s[0:1], 8")
    a("s_load_dwordx2 s[8:9], s[0:1], 24")
    a("s_load_dwordx2 s[10:11], s[0:1], 64")
    if diag:
        stamp(a, 60, True)
        stamp(a, 62)
    a("v_lshrrev_b32 v1, 6, v0")
    a("v_and_b32 v2, 63, v0")
    a("s_and_b32 s28, s2, 7")
    a("v_readfirstlane_b32 s30, v1")
    a("s_lshr_b32 s29, s2, 3")
    a("v_lshrrev_b32 v3, 3, v2")
    a("v_and_b32 v4, 7, v2")
    a(f"s_mov_b32 s31, {F_*4}")
    a("v_mul_lo_u32 v5, v3, s31")
    a("v_lshl_add_u32 v5, v4, 4, v5")
    a("s_lshl_b32 s32, s28, 2")
    a("s_add_u32 s32, s32, s30")
    a(f"s_mul_i32 s33, s32, {32*F_*4}")
    a("s_lshl_b32 s34, s29, 9")
    a("s_add_u32 s33, s33, s34")
    a("v_lshlrev_b32 v6, 3, v4")
    a(f"s_mul_i32 s35, s28, {F_*2}")
    a("s_lshl_b32 s34, s29, 8")
    a("s_add_u32 s35, s35, s34")
    a("v_lshlrev_b32 v7, 9, v4")
    a("v_lshl_add_u32 v7, v3, 4, v7")
    a(f"s_mul_i32 s36, s32, {224*1024}")
    a("s_lshl_b32 s34, s29, 13")
    a("s_add_u32 s36, s36, s34")
    a("s_add_u32 s37, s36, 4096")
    a("s_waitcnt lgkmcnt(0)")
    srd(a, 12, 4, 0, QW_BYTES)
    srd(a, 16, 6, 0, SC_BYTES)
    srd(a, 20, 8, 0, SC_BYTES)
    srd(a, 24, 10, WQ_OFF, WQ_BYTES)
    vm = VM(a)
    vS, vZ, vQ = 16, 24, 64
    for half in range(2):
        for t in range(2):
            vm.issue("s", f"buffer_load_dwordx2 v[{vS+half*4+t*2}:{vS+half*4+t*2+1}], v6, s[16:19], s35 offen offset:{half*128+t*64}")
            vm.issue("s", f"buffer_load_dwordx2 v[{vZ+half*4+t*2}:{vZ+half*4+t*2+1}], v6, s[20:23], s35 offen offset:{half*128+t*64}")
    for rg in range(4):
        for half in range(2):
            for t in range(2):
                r = vQ + (rg * 2 + half) * 8 + t * 4
                vm.issue(f"q{rg}{half}", f"buffer_load_dwordx4 v[{r}:{r+3}], v5, s[12:15], s33 offen offset:{half*256+t*128}{lmod}")
        if rg < 3:
            a(f"s_add_u32 s33, s33, {8*F_*4}")
    vm.wait("s")
    a("s_mov_b32 s38, 0xffff0000")
    for half in range(2):
        for i in range(4):
            a(f"v_lshlrev_b32 v{32+half*8+2*i}, 16, v{vS+half*4+i}")
            a(f"v_and_b32 v{32+half*8+2*i+1}, s38, v{vS+half*4+i}")
            a(f"v_lshlrev_b32 v{48+half*8+2*i}, 16, v{vZ+half*4+i}")
            a(f"v_and_b32 v{48+half*8+2*i+1}, s38, v{vZ+half*4+i}")
    for rg in range(4):
        for half in range(2):
            r = vQ + (rg * 2 + half) * 8
            vm.wait(f"q{rg}{half}")
            for i in range(8):
                a(f"v_cvt_f32_i32 v{r+i}, v{r+i}")
            for i in range(4):
                a(f"v_cvt_pk_bf16_f32 v{8+i}, v{r+2*i}, v{r+2*i+1}")
            for i in range(4):
                a(f"v_lshlrev_b32 v{r+2*i}, 16, v{8+i}")
                a(f"v_and_b32 v{r+2*i+1}, s38, v{8+i}")
            for i in range(8):
                a(f"v_sub_f32 v{r+i}, v{r+i}, v{48+half*8+i}")
            for i in range(4):
                a(f"v_cvt_pk_bf16_f32 v{8+i}, v{r+2*i}, v{r+2*i+1}")
            for i in range(4):
                a(f"v_lshlrev_b32 v{r+2*i}, 16, v{8+i}")
                a(f"v_and_b32 v{r+2*i+1}, s38, v{8+i}")
            for i in range(8):
                a(f"v_mul_f32 v{r+i}, v{r+i}, v{32+half*8+i}")
            for i in range(4):
                a(f"v_cvt_pk_bf16_f32 v{r+i}, v{r+2*i}, v{r+2*i+1}")
            vm.issue("st", f"buffer_store_dwordx4 v[{r}:{r+3}], v7, s[24:27], s{36+half} offen offset:{rg*128}{smod}")
    if diag:
        stamp(a, 64)
        stamp(a, 66)
        a("s_waitcnt vmcnt(0)")
        stamp(a, 68)
        stamp(a, 70, True)
        stamps_out(a, [60, 62, 64, 66, 68, 70], 10, 2, 72, stoff)
    a.lab("L_end_" + name)
    a("s_endpgm")
    return a.text(), kernel_desc(name, 128, 128)


def gen_gemm3(name="gemm3_kernel", D=3, R=6, diag=False, xmap=(2, 4), smod="", stoff=0, LA=5):
    a = Asm()
    kernel_head(a, name)
    assert D <= R - 2
    a("s_cmp_ge_u32 s2, 256")
    a("s_cbranch_scc1 L_end_" + name)
    a("s_load_dwordx2 s[4:5], s[0:1], 48")
    a("s_load_dwordx2 s[6:7], s[0:1], 64")
    if diag:
        stamp(a, 60, True)
        stamp(a, 62)
    sW, sST, sNR, sW4, sB, sY = 20, 21, 22, 23, 24, 25
    a("v_lshrrev_b32 v1, 6, v0")
    a("v_and_b32 v2, 63, v0")
    a("s_and_b32 s27, s2, 7")
    a(f"v_readfirstlane_b32 s{sW}, v1")
    a("s_lshr_b32 s28, s2, 3")
    mx, nx = xmap
    mper, nper = 16 // mx, 16 // nx
    lg = {1: 0, 2: 1, 4: 2, 8: 3, 16: 4}
    a(f"s_and_b32 s29, s27, {mx-1}")
    a(f"s_lshl_b32 s29, s29, {lg[mper]}")
    a(f"s_and_b32 s30, s28, {mper-1}")
    a(f"s_add_u32 s{sST}, s29, s30")
    a(f"s_lshr_b32 s29, s27, {lg[mx]}")
    a(f"s_lshl_b32 s29, s29, {lg[nper]}")
    a(f"s_lshr_b32 s30, s28, {lg[mper]}")
    a(f"s_add_u32 s{sNR}, s29, s30")
    a(f"s_lshl_b32 s{sW4}, s{sW}, 12")
    vX, vB, vL, vL2, vY = 8, 9, 10, 11, 12
    vF, vAcc, vO = 32, 64, 96
    a(f"v_lshlrev_b32 v{vL}, 4, v2")
    a(f"v_add_u32 v{vL2}, 0x10000, v{vL}")
    a(f"s_lshl_b32 s29, s{sST}, 2")
    a(f"s_add_u32 s29, s29, s{sW}")
    a("s_lshl_b32 s30, s29, 16")
    a(f"v_add_u32 v{vX}, s30, v{vL}")
    a(f"s_mul_i32 s30, s{sNR}, {7*65536}")
    a(f"s_add_u32 s30, s30, s{sW4}")
    a(f"v_add_u32 v{vB}, s30, v{vL}")
    a("v_and_b32 v3, 31, v2")
    a(f"s_mov_b32 s31, {F_*2}")
    a("v_mul_lo_u32 v3, v3, s31")
    a("v_lshrrev_b32 v4, 5, v2")
    a(f"v_lshl_add_u32 v{vY}, v4, 5, v3")
    a(f"s_mul_i32 s{sY}, s29, {32*F_*2}")
    a(f"s_mul_i32 s30, s{sNR}, 448")
    a(f"s_add_u32 s{sY}, s{sY}, s30")
    a("s_waitcnt lgkmcnt(0)")
    srd(a, 8, 6, W_OFF, W_BYTES)
    srd(a, 12, 6, XR_OFF, XR_BYTES)
    srd(a, 16, 4, 0, Y_BYTES)
    vm = VM(a)
    NS = 28

    def dma(t, p):
        if p == 0:
            a(f"s_add_u32 m0, s{sW4}, {(t % R)*16384}")
            a(f"s_mov_b32 s{sB}, {t*16384}")
        vm.issue(f"d{t}", f"buffer_load_dwordx4 v{vB}, s[8:11], s{sB} offen offset:{p*1024} lds")

    def xload(ks):
        if ks % 4 == 0:
            a(f"s_mov_b32 s26, {ks*1024}")
        vm.issue(f"x{ks//16}", f"buffer_load_dwordx4 a[{4*ks}:{4*ks+3}], v{vX}, s[12:15], s26 offen offset:{(ks%4)*1024}")

    NF = 8

    def dsread(g):
        t, m = divmod(g, 16)
        slot = t % R
        base = vL2 if slot >= 4 else vL
        r = vF + (g % NF) * 4
        a(f"ds_read_b128 v[{r}:{r+3}], v{base} offset:{(slot&3)*16384 + m*1024}")

    for t in range(3):
        for p in range(4):
            dma(t, p)
        for ks in range(16 * t, 16 * t + 16):
            xload(ks)
    vm.wait("d0", "x0")
    a("s_barrier")
    if diag:
        stamp(a, 64)
    for g in range(LA):
        dsread(g)
    NG = NS * 16
    pend = []
    for g in range(NG):
        t, m = divmod(g, 16)
        b = t // 4
        ks = g % 64
        acc = vAcc + (b & 1) * 16
        nl = min(LA - 1, NG - 1 - g)
        a(f"s_waitcnt lgkmcnt({nl})")
        r = vF + (g % NF) * 4
        src = "0" if ks == 0 else f"v[{acc}:{acc+15}]"
        a(f"v_mfma_f32_32x32x16_bf16 v[{acc}:{acc+15}], v[{r}:{r+3}], a[{4*ks}:{4*ks+3}], {src}")
        if m == 16 - LA and t + 1 < NS:
            tags = [f"d{t+1}"] + ([f"x{t+1}"] if t + 1 < 4 else [])
            vm.wait(*tags)
            a("s_barrier")
        if g + LA < NG:
            dsread(g + LA)
        if t == 0:
            if m < 4:
                dma(3, m)
            if m >= 4 and m < 12:
                xload(48 + 2 * (m - 4))
                xload(48 + 2 * (m - 4) + 1)
        elif t + 3 < NS and m in (1, 4, 7, 10):
            dma(t + 3, (m - 1) // 3)
        if b > 0 and t % 4 == 0:
            pacc = vAcc + ((b - 1) & 1) * 16
            if m in (4, 5, 6, 7):
                i = m - 4
                a(f"v_cvt_pk_bf16_f32 v{vO+2*i}, v{pacc+4*i}, v{pacc+4*i+1}")
                a(f"v_cvt_pk_bf16_f32 v{vO+2*i+1}, v{pacc+4*i+2}, v{pacc+4*i+3}")
            if m == 8:
                vm.issue("st", f"buffer_store_dwordx4 v[{vO}:{vO+3}], v{vY}, s[16:19], s{sY} offen offset:{(b-1)*64}{smod}")
            if m == 9:
                vm.issue("st", f"buffer_store_dwordx4 v[{vO+4}:{vO+7}], v{vY}, s[16:19], s{sY} offen offset:{(b-1)*64+16}{smod}")
    if diag:
        stamp(a, 66)
    a("s_nop 7")
    a("s_nop 7")
    pacc = vAcc + (6 & 1) * 16
    for i in range(4):
        a(f"v_cvt_pk_bf16_f32 v{vO+2*i}, v{pacc+4*i}, v{pacc+4*i+1}")
        a(f"v_cvt_pk_bf16_f32 v{vO+2*i+1}, v{pacc+4*i+2}, v{pacc+4*i+3}")
    vm.issue("st", f"buffer_store_dwordx4 v[{vO}:{vO+3}], v{vY}, s[16:19], s{sY} offen offset:{6*64}{smod}")
    vm.issue("st", f"buffer_store_dwordx4 v[{vO+4}:{vO+7}], v{vY}, s[16:19], s{sY} offen offset:{6*64+16}{smod}")
    if diag:
        a("s_waitcnt vmcnt(0)")
        stamp(a, 68)
        stamp(a, 70, True)
        stamps_out(a, [60, 62, 64, 66, 68, 70], 6, 2, 72, stoff)
    a.lab("L_end_" + name)
    a("s_endpgm")
    return a.text(), kernel_desc(name, 512, 256)


def full4(diag=False, **kw):
    ks = [gen_deq(diag=diag, stoff=0, **kw.get("deq", {})),
          gen_gemm2(name="gemm1_kernel", kind=1, diag=diag, stoff=0x10000, xmap=(4, 2), **kw.get("g1", {})),
          gen_gemm2(diag=diag, stoff=0x20000, **kw.get("g2", {})),
          gen_gemm3(diag=diag, stoff=0x30000, **kw.get("g3", {}))]
    return wrap([("deq_kernel", 224, 256, 0), ("gemm1_kernel", 128, 256, 131072),
                 ("gemm2_kernel", 224, 256, 131072), ("gemm3_kernel", 256, 256, 6 * 16384)], ks)


def wrap(launches, kernels):
    out = []
    for n, g, b, l in launches:
        out.append(f"; @launch kernel={n} grid=({g},1,1) block=({b},1,1) lds={l}")
    out.append('.amdgcn_target "amdgcn-amd-amdhsa--gfx950"')
    out.append(".text")
    for t, d in kernels:
        out.append(t)
    out.append('.section .rodata,"a"')
    for t, d in kernels:
        out.append(d)
    return "\n".join(out)


if __name__ == "__main__":
    print(full4())
```

```python
from gen import Asm, kernel_head, kernel_desc, srd, wrap, S_, D_, F_, WQ_OFF, W_OFF, XR_OFF, ST_OFF
from gen import V_BYTES, U_BYTES, X_BYTES, QW_BYTES, SC_BYTES, Y_BYTES

FL_OFF = 0x1800000
FQ_OFF = FL_OFF
FX_OFF = FL_OFF + 0x1000
FW_OFF = FL_OFF + 0x2000
WS_BYTES = 0x2200000
QP = F_ * 2


class Ctr:
    def __init__(self, a, name, mx):
        self.a, self.name, self.mx, self.ops = a, name, mx, []

    def note(self, tag):
        self.ops.append(tag)

    def issue(self, tag, text):
        self.a(text)
        self.ops.append(tag)

    def count(self, *tags):
        last = -1
        for i, t in enumerate(self.ops):
            if t in tags:
                last = i
        if last < 0:
            return None
        return min(len(self.ops) - 1 - last, self.mx)

    def wait(self, *tags):
        n = self.count(*tags)
        if n is not None:
            self.a(f"s_waitcnt {self.name}({n})")
            self.ops = self.ops[len(self.ops) - n:] if n else []

    def drained(self):
        self.ops = []


SRD_V, SRD_WS, SRD_Y, SRD_P1, SRD_P2, SRD_P3, SRD_DBG = 4, 8, 12, 16, 20, 24, 28
sW, sXCD, sI, sMT, sNT, sCNT, sW4, sT = 32, 33, 34, 35, 36, 37, 38, 39
sAk, sBk = 40, 48
sNON = 56
sWA, sWB = 58, 59
sST, sNR, sY, sFX = 60, 61, 62, 63
SPIN_MAX = 1 << 22


def rr(p, b, n):
    return f"{p}[{b}:{b+n-1}]"


def gen_fused(name="standalone__weight_only_int_quip__prompt_kernel", diag=False, D=6, lead=(1, 2, 8, 4), LA=4,
              hstart=12, hpat=(1, 1, 1, 0), qmod=" nt", xmod="", ymod="", D3=4, LA3=5, g1rot=True):
    a = Asm()
    kernel_head(a, name)
    R = 8
    NS = 56
    nst = [0]

    def stamp(k):
        if diag:
            a(f"s_memrealtime s[{70+2*k}:{71+2*k}]")

    uid = [0]

    def poll(vaddr, vdata, first_issued=False, vm=None, tag=None):
        uid[0] += 1
        u = uid[0]
        a(f"s_mov_b32 s{sT}, {SPIN_MAX}")
        if first_issued:
            a(f"s_branch L_pchk{u}")
        a.lab(f"L_poll{u}")
        a(f"buffer_load_dwordx2 {rr('v', vdata, 2)}, v{vaddr}, {rr('s', SRD_WS, 4)}, 0 offen sc1")
        a("s_waitcnt vmcnt(0)")
        a.lab(f"L_pchk{u}")
        a(f"v_cmp_eq_u64 vcc, {rr('s', sNON, 2)}, {rr('v', vdata, 2)}")
        a(f"s_sub_u32 s{sT}, s{sT}, 1")
        a("s_cbranch_scc1 L_end")
        a("s_cmp_eq_u64 vcc, -1")
        a(f"s_cbranch_scc0 L_poll{u}")

    def get_nonce(vdata):
        uid[0] += 1
        u = uid[0]
        a(f"s_mov_b32 s{sT}, {SPIN_MAX}")
        a(f"s_branch L_nchk{u}")
        a.lab(f"L_npoll{u}")
        a(f"buffer_load_dwordx2 {rr('v', vdata, 2)}, off, {rr('s', SRD_DBG, 4)}, 0 sc1")
        a("s_waitcnt vmcnt(0)")
        a.lab(f"L_nchk{u}")
        a(f"v_readfirstlane_b32 s{sNON}, v{vdata}")
        a(f"v_readfirstlane_b32 s{sNON+1}, v{vdata+1}")
        a(f"s_sub_u32 s{sT}, s{sT}, 1")
        a("s_cbranch_scc1 L_end")
        a(f"s_cmp_eq_u64 {rr('s', sNON, 2)}, 0")
        a(f"s_cbranch_scc1 L_npoll{u}")

    def set_flag(soff):
        uid[0] += 1
        u = uid[0]
        a(f"s_cmp_lg_u32 s{sW}, 0")
        a(f"s_cbranch_scc1 L_nof{u}")
        a(f"v_mov_b32 v2, s{sNON}")
        a(f"v_mov_b32 v3, s{sNON+1}")
        a("s_mov_b64 exec, 1")
        a(f"buffer_store_dwordx2 v[2:3], off, {rr('s', SRD_WS, 4)}, s{soff} sc1")
        a("s_mov_b64 exec, -1")
        a.lab(f"L_nof{u}")

    a("s_cmp_ge_u32 s2, 256")
    a("s_cbranch_scc1 L_end")
    a("s_load_dwordx16 s[64:79], s[0:1], 0")
    a("s_load_dwordx2 s[80:81], s[0:1], 64")
    a("s_memrealtime s[82:83]")
    a("v_lshrrev_b32 v1, 6, v0")
    a("v_and_b32 v0, 63, v0")
    a(f"s_and_b32 s{sXCD}, s2, 7")
    a(f"v_readfirstlane_b32 s{sW}, v1")
    a(f"s_lshr_b32 s{sI}, s2, 3")
    a(f"s_mul_i32 s{sT}, s{sXCD}, 28")
    a(f"s_add_u32 s{sT}, s{sT}, s{sI}")
    a(f"s_and_b32 s{sMT}, s{sT}, 7")
    a(f"s_lshr_b32 s{sNT}, s{sT}, 3")
    a(f"s_lshl_b32 s{sW4}, s{sW}, 12")
    a("s_waitcnt lgkmcnt(0)")
    srd(a, SRD_V, 74, 0, V_BYTES)
    srd(a, SRD_WS, 80, 0, WS_BYTES)
    srd(a, SRD_Y, 76, 0, Y_BYTES)
    srd(a, SRD_DBG, 78, 0, 256)
    a(f"s_or_b32 s{sT}, s2, s{sW}")
    a(f"s_cmp_lg_u32 s{sT}, 0")
    a("s_cbranch_scc1 L_nononce")
    a("v_mov_b32 v2, s82")
    a("v_mov_b32 v3, s83")
    a("v_or_b32 v3, 0x40000000, v3")
    a("s_mov_b64 exec, 1")
    a(f"buffer_store_dwordx2 v[2:3], off, {rr('s', SRD_DBG, 4)}, 0 sc1")
    a("s_mov_b64 exec, -1")
    a.lab("L_nononce")
    a(f"s_cmp_ge_u32 s{sI}, 16")
    a("s_cbranch_scc1 L_deq")

    srd(a, SRD_P1, 64, 0, X_BYTES)
    srd(a, SRD_P2, 72, 0, U_BYTES)
    if diag:
        a("s_mov_b32 s70, s82")
    UP = D_ * 2
    g1U, g1X, g1L, g1XA, g1XF = 128, 132, 136, 152, 160
    vBf, vAcc = 32, 64
    s_st, s_et, s_x, s_u = 64, 65, 66, 67
    a(f"s_and_b32 s68, s{sXCD}, 3")
    a("s_lshl_b32 s68, s68, 2")
    a(f"s_and_b32 s69, s{sI}, 3")
    a(f"s_add_u32 s{s_st}, s68, s69")
    a(f"s_lshr_b32 s68, s{sXCD}, 2")
    a("s_lshl_b32 s68, s68, 2")
    a(f"s_lshr_b32 s{sT}, s{sI}, 2")
    a(f"s_add_u32 s{s_et}, s68, s{sT}")
    if g1rot:
        a(f"s_add_u32 s{s_x}, s69, s{sT}")
        a(f"s_and_b32 s{s_x}, s{s_x}, 3")
        a(f"s_lshl_b32 s{s_x}, s{s_x}, 9")
    else:
        a(f"s_mov_b32 s{s_x}, 0")
    a(f"s_lshl_b32 s{s_u}, s{s_x}, 10")
    a("v_lshrrev_b32 v3, 4, v0")
    a("v_and_b32 v4, 15, v0")
    a("v_lshlrev_b32 v6, 11, v3")
    a(f"s_lshl_b32 s68, s{sW}, 15")
    a(f"s_lshl_b32 s69, s{s_et}, 8")
    a("s_add_u32 s68, s68, s69")
    for p in range(4):
        a(f"v_or_b32 v5, {4*(p>>1)}, v3")
        a("v_lshlrev_b32 v5, 1, v5")
        a("v_xor_b32 v5, v5, v4")
        a("v_lshl_add_u32 v5, v5, 4, v6")
        a(f"s_add_u32 s69, s68, {p*(4*UP-1024)}")
        a(f"v_add_u32 v{g1U+p}, s69, v5")
    a("v_lshrrev_b32 v3, 3, v0")
    a("v_and_b32 v4, 7, v0")
    a("v_lshlrev_b32 v6, 11, v3")
    a("v_lshrrev_b32 v3, 1, v3")
    a(f"s_lshl_b32 s68, s{s_st}, 2")
    a(f"s_add_u32 s68, s68, s{sW}")
    a("s_lshl_b32 s68, s68, 16")
    for p in range(4):
        a(f"v_or_b32 v5, {4*(p&1)}, v3")
        a("v_xor_b32 v5, v5, v4")
        a("v_lshl_add_u32 v5, v5, 4, v6")
        a(f"s_add_u32 s69, s68, {p*(8*2048-1024)}")
        a(f"v_add_u32 v{g1X+p}, s69, v5")
    vm = Ctr(a, "vmcnt", 63)
    lg = Ctr(a, "lgkmcnt", 15)
    NS1, R1, D1 = 16, 4, 2

    def g1_loads(s):
        sl = s % R1
        out = [(None, f"s_add_u32 m0, s{sW4}, {sl*32768}")]
        for p in range(4):
            out.append((f"g{s}", f"buffer_load_dwordx4 v{g1U+p}, {rr('s', SRD_P2, 4)}, s{s_u} offen offset:{p*1024}{xmod} lds"))
        out.append((None, f"s_add_u32 m0, s{sW4}, {sl*32768+16384}"))
        for p in range(4):
            out.append((f"g{s}", f"buffer_load_dwordx4 v{g1X+p}, {rr('s', SRD_P1, 4)}, s{s_x} offen offset:{p*1024}{xmod} lds"))
        out.append((None, f"s_add_u32 s{s_x}, s{s_x}, 128"))
        out.append((None, f"s_and_b32 s{s_x}, s{s_x}, 2047"))
        out.append((None, f"s_lshl_b32 s{s_u}, s{s_x}, 10"))
        return out

    def emit(item):
        tag, text = item
        if tag is None:
            a(text)
        else:
            vm.issue(tag, text)

    for s in range(D1):
        for it in g1_loads(s):
            emit(it)
            if "m0" in it[1]:
                a("s_nop 0")
    a("v_bfe_u32 v4, v0, 2, 2")
    a("v_lshrrev_b32 v3, 4, v0")
    a("v_lshl_add_u32 v5, v3, 3, v4")
    a("v_lshlrev_b32 v5, 8, v5")
    a("v_and_b32 v3, 1, v3")
    a("v_lshl_add_u32 v4, v3, 2, v4")
    a("v_lshl_add_u32 v5, v4, 5, v5")
    a("v_and_b32 v6, 3, v0")
    a("v_lshl_add_u32 v5, v6, 3, v5")
    for j in range(8):
        a(f"v_xor_b32 v{g1L+j}, {32*j}, v5")
        a(f"v_add_u32 v{g1L+8+j}, 0x10000, v{g1L+j}")
    a("v_and_b32 v3, 15, v0")
    a("v_lshrrev_b32 v4, 4, v0")
    a("v_lshrrev_b32 v5, 1, v3")
    a("v_xor_b32 v4, v4, v5")
    a("v_lshlrev_b32 v4, 4, v4")
    a("v_lshl_add_u32 v4, v3, 7, v4")
    a(f"v_add_u32 v{g1XA}, s{sW4}, v4")
    a(f"v_xor_b32 v{g1XA+1}, 64, v{g1XA}")
    a(f"v_add_u32 v{g1XA+2}, 0x10000, v{g1XA}")
    a(f"v_add_u32 v{g1XA+3}, 0x10000, v{g1XA+1}")

    def g1_tr(g, t):
        s, f = divmod(g, 16)
        u, j = divmod(f, 8)
        sl = s % R1
        base = g1L + j + (8 if sl >= 2 else 0)
        r = vBf + (g % 8) * 4 + 2 * t
        lg.issue(f"b{g}", f"ds_read_b64_tr_b16 {rr('v', r, 2)}, v{base} offset:{(sl&1)*32768 + u*8192 + t*1024}")

    def g1_xr(step, aa):
        s, u = divmod(step, 2)
        sl = s % R1
        base = g1XA + u + (2 if sl >= 2 else 0)
        r = g1XF + u * 8 + aa * 4
        lg.issue(f"x{step}", f"ds_read_b128 {rr('v', r, 4)}, v{base} offset:{(sl&1)*32768 + 16384 + aa*2048}")

    vm.wait("g0")
    a("s_barrier")
    g1_xr(0, 0)
    g1_xr(0, 1)
    for g in range(LA):
        g1_tr(g, 0)
        g1_tr(g, 1)
    NG1 = NS1 * 16
    for s in range(NS1):
        pend = g1_loads(s + D1) if s + D1 < NS1 else []
        if s == 10:
            pend = pend + [("non", f"buffer_load_dwordx2 v[14:15], off, {rr('s', SRD_DBG, 4)}, 0 sc1")]
        for f in range(16):
            g = s * 16 + f
            u, j = divmod(f, 8)
            if f % 2 == 0:
                lg.wait(f"b{g}", f"b{g+1}", f"x{2*s+u}")
            rb = vBf + (g % 8) * 4
            for aa in range(2):
                rc = vAcc + (j >> 1) * 16 + aa * 8 + (j & 1) * 4
                rx = g1XF + u * 8 + aa * 4
                src = "0" if (s == 0 and u == 0) else rr('v', rc, 4)
                a(f"v_mfma_f32_16x16x32_bf16 {rr('v', rc, 4)}, {rr('v', rb, 4)}, {rr('v', rx, 4)}, {src}")
                if f == 16 - LA and aa == 0 and s + 1 < NS1:
                    vm.wait(f"g{s+1}")
                    a("s_barrier")
                if g + LA < NG1:
                    g1_tr(g + LA, aa)
                if aa == 0 and f in (4, 5):
                    g1_xr(2 * s + 1, f - 4)
                if aa == 0 and f in (13, 14) and s + 1 < NS1:
                    g1_xr(2 * s + 2, f - 13)
                if pend and (2 * f + aa) % 2 == 1 and not (f % 2 == 1 and aa == 1 and False):
                    emit(pend.pop(0))
        assert not pend
    stamp(1)
    vm.wait("non")
    get_nonce(14)
    a("s_barrier")
    a(f"s_lshl_b32 s68, s{s_st}, 2")
    a(f"s_add_u32 s68, s68, s{sW}")
    a("s_lshl_b32 s68, s68, 16")
    a(f"s_lshl_b32 s69, s{s_et}, 13")
    a("s_add_u32 s68, s68, s69")
    a(f"s_add_u32 s68, s68, {XR_OFF}")
    a("s_add_u32 s69, s68, 4096")
    a("v_lshlrev_b32 v2, 4, v0")
    for jj in range(4):
        for aa in range(2):
            rc = vAcc + jj * 16 + aa * 8
            rd = vBf + (jj * 2 + aa) * 4
            for i in range(4):
                a(f"v_cvt_pk_bf16_f32 v{rd+i}, v{rc+2*i}, v{rc+2*i+1}")
            a(f"buffer_store_dwordx4 {rr('v', rd, 4)}, v2, {rr('s', SRD_WS, 4)}, s{68+(jj>>1)} offen offset:{(jj&1)*2048+aa*1024} sc1")
    a(f"s_lshl_b32 s{sFX}, s{s_st}, 8")
    a(f"s_lshl_b32 s68, s{s_et}, 3")
    a(f"s_add_u32 s{sFX}, s{sFX}, s68")
    a(f"s_add_u32 s{sFX}, s{sFX}, {FX_OFF}")
    a("s_branch L_g2")

    a.lab("L_deq")
    srd(a, SRD_P1, 66, 0, QW_BYTES)
    srd(a, SRD_P2, 68, 0, SC_BYTES)
    srd(a, SRD_P3, 70, 0, SC_BYTES)
    if diag:
        a("s_mov_b32 s70, s82")
    a(f"s_sub_u32 s64, s{sI}, 16")
    a("s_lshl_b32 s64, s64, 2")
    a(f"s_add_u32 s64, s64, s{sW}")
    a("s_and_b32 s65, s64, 7")
    a("s_lshr_b32 s64, s64, 3")
    a(f"s_lshl_b32 s66, s{sXCD}, 3")
    a("s_add_u32 s66, s66, s65")
    a(f"s_mul_i32 s67, s66, {16*F_*4}")
    a(f"s_mul_i32 s68, s64, {7*256}")
    a("s_add_u32 s67, s67, s68")
    a(f"s_add_u32 s68, s67, {8*F_*4}")
    a(f"s_mul_i32 s69, s{sXCD}, {F_*2}")
    a(f"s_mul_i32 s{sT}, s64, {7*128}")
    a(f"s_add_u32 s69, s69, s{sT}")
    a("v_lshrrev_b32 v3, 3, v0")
    a("v_and_b32 v4, 7, v0")
    a(f"s_mov_b32 s{sT}, {F_*4}")
    a(f"v_mul_lo_u32 v5, v3, s{sT}")
    a("v_lshl_add_u32 v5, v4, 4, v5")
    a("v_lshlrev_b32 v6, 3, v4")
    vm = Ctr(a, "vmcnt", 63)
    vQ, vSZ = 128, 64
    for st in range(7):
        for t in range(2):
            vm.issue(f"q{st}", f"buffer_load_dwordx2 {rr('v', vSZ+st*8+2*t, 2)}, v6, {rr('s', SRD_P2, 4)}, s69 offen offset:{st*128+t*64}")
            vm.issue(f"q{st}", f"buffer_load_dwordx2 {rr('v', vSZ+st*8+4+2*t, 2)}, v6, {rr('s', SRD_P3, 4)}, s69 offen offset:{st*128+t*64}")
        for rg in range(2):
            for t in range(2):
                vm.issue(f"q{st}", f"buffer_load_dwordx4 {rr('v', vQ+st*16+rg*8+4*t, 4)}, v5, {rr('s', SRD_P1, 4)}, s{67+rg} offen offset:{st*256+t*128}{qmod}")
    vm.issue("non", f"buffer_load_dwordx2 v[14:15], off, {rr('s', SRD_DBG, 4)}, 0 sc1")
    a("v_lshrrev_b32 v7, 2, v4")
    a("v_lshlrev_b32 v7, 11, v7")
    a("v_and_b32 v4, 3, v4")
    a("v_lshl_add_u32 v7, v4, 8, v7")
    a("v_lshl_add_u32 v7, v3, 4, v7")
    a("s_lshr_b32 s67, s66, 1")
    a(f"s_mul_i32 s67, s67, {224*1024}")
    a("s_and_b32 s68, s66, 1")
    a("s_lshl_b32 s68, s68, 10")
    a("s_add_u32 s67, s67, s68")
    a(f"s_mul_i32 s68, s64, {7*4096}")
    a("s_add_u32 s67, s67, s68")
    if WQ_OFF:
        a(f"s_add_u32 s67, s67, {WQ_OFF}")
    a("s_mov_b32 s68, 0xffff0000")
    for st in range(7):
        vm.wait(f"q{st}")
        for i in range(4):
            a(f"v_lshlrev_b32 v{32+2*i}, 16, v{vSZ+st*8+i}")
            a(f"v_and_b32 v{33+2*i}, s68, v{vSZ+st*8+i}")
            a(f"v_lshlrev_b32 v{40+2*i}, 16, v{vSZ+st*8+4+i}")
            a(f"v_and_b32 v{41+2*i}, s68, v{vSZ+st*8+4+i}")
        for rg in range(2):
            r = vQ + st * 16 + rg * 8
            for i in range(8):
                a(f"v_cvt_f32_i32 v{r+i}, v{r+i}")
            for i in range(4):
                a(f"v_cvt_pk_bf16_f32 v{48+i}, v{r+2*i}, v{r+2*i+1}")
            for i in range(4):
                a(f"v_lshlrev_b32 v{r+2*i}, 16, v{48+i}")
                a(f"v_and_b32 v{r+2*i+1}, s68, v{48+i}")
            for i in range(8):
                a(f"v_sub_f32 v{r+i}, v{r+i}, v{40+i}")
            for i in range(4):
                a(f"v_cvt_pk_bf16_f32 v{48+i}, v{r+2*i}, v{r+2*i+1}")
            for i in range(4):
                a(f"v_lshlrev_b32 v{r+2*i}, 16, v{48+i}")
                a(f"v_and_b32 v{r+2*i+1}, s68, v{48+i}")
            for i in range(8):
                a(f"v_mul_f32 v{r+i}, v{r+i}, v{32+i}")
            for i in range(4):
                a(f"v_cvt_pk_bf16_f32 v{r+i}, v{r+2*i}, v{r+2*i+1}")
            vm.issue("st", f"buffer_store_dwordx4 {rr('v', r, 4)}, v7, {rr('s', SRD_WS, 4)}, s67 offen offset:{rg*128} sc1")
        a("s_add_u32 s67, s67, 4096")
    a("s_waitcnt vmcnt(0)")
    get_nonce(14)
    a("s_barrier")
    a(f"s_lshl_b32 s64, s{sXCD}, 8")
    a(f"s_sub_u32 s65, s{sI}, 16")
    a("s_lshl_b32 s65, s65, 3")
    a("s_add_u32 s64, s64, s65")
    a(f"s_add_u32 s64, s64, {FQ_OFF}")
    set_flag(64)
    stamp(1)
    a(f"s_mov_b32 s{sFX}, -1")
    a(f"s_cmp_ge_u32 s{sI}, 28")
    a("s_cbranch_scc1 L_helper")

    a.lab("L_g2")
    vAoff, vBoff, vL, vAr = 8, 9, 16, 128
    a("v_lshrrev_b32 v3, 4, v0")
    a("v_and_b32 v4, 15, v0")
    a(f"s_mov_b32 s64, {QP}")
    a("v_mul_lo_u32 v6, v3, s64")
    a(f"s_mul_i32 s64, s{sW}, {16*QP}")
    a(f"s_lshl_b32 s65, s{sNT}, 8")
    a("s_add_u32 s64, s64, s65")
    for p in range(4):
        a(f"v_or_b32 v5, {4*(p&1)}, v3")
        a("v_lshlrev_b32 v5, 1, v5")
        a("v_xor_b32 v5, v5, v4")
        a("v_lshl_add_u32 v5, v5, 4, v6")
        a(f"s_add_u32 s65, s64, {p*(4*QP-1024)}")
        a(f"v_add_u32 v{vBoff+p}, s65, v5")
    cm, cn, P, c = lead
    a(f"s_mul_i32 s66, s{sMT}, {cm}")
    a(f"s_mul_i32 s64, s{sNT}, {cn}")
    a("s_add_u32 s66, s66, s64")
    for k in range(8):
        a(f"s_sub_u32 s64, s66, {k}")
        a(f"s_and_b32 s64, s64, {P-1}")
        a(f"s_cmp_lt_u32 s64, {c}")
        a("s_cselect_b32 s65, -1, 0")
        a(f"s_cmp_eq_u32 s64, {c}")
        a(f"s_cselect_b32 s65, {c}, s65")
        a(f"s_add_u32 s64, s65, {k}")
        a(f"s_mul_i32 s{sAk+k}, s64, 4096")
        a(f"s_mul_i32 s{sBk+k}, s64, {64*QP}")

    def wrapfix(k, tau):
        if tau != 0 and tau < NS - 8:
            return sAk + k, sBk + k, []
        if tau == 0:
            ins = [f"s_cmp_lt_i32 s{sAk+k}, 0", f"s_cselect_b32 s{sWA}, {(NS-1)*4096}, s{sAk+k}",
                   f"s_cselect_b32 s{sWB}, {(NS-1)*64*QP}, s{sBk+k}"]
        else:
            ins = [f"s_sub_u32 s{sWA}, s{sAk+k}, {NS*4096}", f"s_sub_u32 s{sWB}, s{sBk+k}, {NS*64*QP}",
                   f"s_cmp_ge_u32 s{sAk+k}, {NS*4096}", f"s_cselect_b32 s{sWA}, s{sWA}, s{sAk+k}",
                   f"s_cselect_b32 s{sWB}, s{sWB}, s{sBk+k}"]
        return sWA, sWB, ins

    def aload(slot, u, so):
        return f"buffer_load_dwordx4 {rr('v', vAr+slot*16+u*4, 4)}, v{vAoff}, {rr('s', SRD_WS, 4)}, s{so} offen offset:{u*1024} sc1"

    def dma(p, so):
        return f"buffer_load_dwordx4 v{vBoff+p}, {rr('s', SRD_V, 4)}, s{so} offen offset:{p*1024} lds"

    def setm0(slot):
        return f"s_add_u32 m0, s{sW4}, {slot*16384}"

    def adv(k):
        return [f"s_add_u32 s{sAk+k}, s{sAk+k}, {8*4096}", f"s_add_u32 s{sBk+k}, s{sBk+k}, {8*64*QP}"]

    def dsread(slot, f, t):
        u, j = divmod(f, 8)
        base = vL + j + (8 if slot >= 4 else 0)
        return f"ds_read_b64_tr_b16 {rr('v', vBf+(f%8)*4+2*t, 2)}, v{base} offset:{(slot&3)*16384 + u*4096 + t*8192}"

    sa0, sb0, ins = wrapfix(0, 0)
    for x in ins:
        a(x)
    for s in range(2):
        a(setm0(s))
        a("s_nop 0")
        for p in range(4):
            a(dma(p, sb0 if s == 0 else sBk + 1))
    a("v_and_b32 v13, 15, v0")
    a("v_lshlrev_b32 v13, 3, v13")
    a(f"s_lshl_b32 s64, s{sMT}, 8")
    a(f"s_add_u32 s64, s64, {FQ_OFF}")
    a("v_add_u32 v13, s64, v13")
    a(f"buffer_load_dwordx2 v[14:15], v13, {rr('s', SRD_WS, 4)}, 0 offen sc1")
    a(f"s_lshl_b32 s64, s{sMT}, 2")
    a(f"s_add_u32 s64, s64, s{sW}")
    a(f"s_mul_i32 s64, s64, {224*1024}")
    if WQ_OFF:
        a(f"s_add_u32 s64, s64, {WQ_OFF}")
    a(f"v_lshlrev_b32 v{vAoff}, 4, v0")
    a(f"v_add_u32 v{vAoff}, s64, v{vAoff}")
    a("v_bfe_u32 v4, v0, 2, 2")
    a("v_lshrrev_b32 v3, 4, v0")
    a("v_lshl_add_u32 v3, v3, 2, v4")
    a("v_and_b32 v6, 7, v3")
    a("v_lshlrev_b32 v3, 8, v3")
    a("v_and_b32 v5, 3, v0")
    a("v_lshl_add_u32 v3, v5, 3, v3")
    a("v_lshl_add_u32 v3, v6, 5, v3")
    for j in range(8):
        a(f"v_xor_b32 v{vL+j}, {j*32}, v3")
        a(f"v_add_u32 v{vL+8+j}, 0x10000, v{vL+j}")
    for i in range(64):
        a(f"v_mov_b32 v{vAcc+i}, 0")
    a("s_waitcnt vmcnt(0)")
    poll(13, 14, first_issued=True)
    stamp(2)
    vm = Ctr(a, "vmcnt", 63)
    for s in range(D):
        if s >= 2:
            a(setm0(s % R))
        for u in range(4):
            vm.issue(f"g{s}", aload(s % R, u, sa0 if s == 0 else sAk + s))
            if s >= 2:
                vm.issue(f"g{s}", dma(u, sBk + s))
        if s < D - 1:
            for x in adv(s % 8):
                a(x)
    vm.wait("g0")
    a("s_barrier")
    a(f"s_cmp_eq_u32 s{sFX}, -1")
    a("s_cbranch_scc1 L_nofx")
    set_flag(sFX)
    a.lab("L_nofx")
    for f in range(LA):
        a(dsread(0, f, 0))
        a(dsread(0, f, 1))
    vX = 12 + 1
    a(f"s_and_b32 s64, s{sXCD}, 1")
    a("s_lshl_b32 s64, s64, 3")
    a(f"s_and_b32 s65, s{sI}, 7")
    a(f"s_add_u32 s{sST}, s64, s65")
    a(f"s_lshr_b32 s64, s{sXCD}, 1")
    a("s_lshl_b32 s64, s64, 2")
    a(f"s_lshr_b32 s65, s{sI}, 3")
    a(f"s_add_u32 s{sNR}, s64, s65")

    def g3_addr():
        a("v_and_b32 v13, 7, v0")
        a("v_lshlrev_b32 v13, 3, v13")
        a(f"s_lshl_b32 s64, s{sST}, 8")
        a(f"s_add_u32 s64, s64, {FX_OFF}")
        a("v_add_u32 v13, s64, v13")
        a(f"s_lshl_b32 s64, s{sST}, 2")
        a(f"s_add_u32 s64, s64, s{sW}")
        a("s_lshl_b32 s64, s64, 16")
        a(f"s_add_u32 s64, s64, {XR_OFF}")
        a("v_lshlrev_b32 v7, 4, v0")
        a("v_add_u32 v7, s64, v7")
    g3_addr()

    def xload(n):
        return [(None, f"s_mov_b32 s{sWA}, {(n>>2)*4096}")] * (1 if n % 4 == 0 else 0) + \
               [("x", f"buffer_load_dwordx4 {rr('a', 4*n, 4)}, v7, {rr('s', SRD_WS, 4)}, s{sWA} offen offset:{(n&3)*1024} sc1")]

    xnext = [0]

    def stage(s, tau, abs_known, carry):
        loads = (not abs_known) or tau + D < NS
        last = abs_known and tau == NS - 1
        tslot, k = (s + D) % R, (s + D) % 8
        fill = {g: [] for g in range(32)}
        barg = (16 - LA) * 2
        vpos = [4 * i + 2 for i in range(8)]
        free = [g for g in range(32) if g not in vpos and g % 4 != 3 and g != barg]
        sal = []
        if loads:
            sa, sb, ins = wrapfix(k, tau + D) if abs_known else (sAk + k, sBk + k, [])
            for x in ins:
                a(x)
            sal.append(setm0(tslot))
            for u in range(4):
                fill[vpos[2*u]].append((f"g{tau+D}", aload(tslot, u, sa)))
                fill[vpos[2*u+1]].append((f"g{tau+D}", dma(u, sb)))
        elif abs_known:
            for p_ in vpos:
                its = xload(xnext[0])
                xnext[0] += 1
                if len(its) == 2:
                    fill[p_ - 1].append(its[0])
                fill[p_].append(its[-1])
        if abs_known and tau == NS - 16:
            fill[free[-1]].append(("fx", f"buffer_load_dwordx2 v[14:15], v13, {rr('s', SRD_WS, 4)}, 0 offen sc1"))
        if abs_known and tau == NS - D:
            assert vm.count("fx") is None
            poll(13, 14, first_issued=True)
        sal += list(carry)
        for g, x in zip([g for g in free if g % 4 != 1 or loads], sal):
            fill[g].append((None, x))
        for f in range(16):
            rem = (15 - f) if last else 99
            if f % 2 == 0:
                a(f"s_waitcnt lgkmcnt({2*min(LA-2, max(rem-1, 0))})")
            rb = vBf + (f % 8) * 4
            u, j = divmod(f, 8)
            gf = f + LA
            rd = []
            if gf < 16:
                rd = [dsread(s, gf, 0), dsread(s, gf, 1)]
            elif not last:
                rd = [dsread((s + 1) % R, gf - 16, 0), dsread((s + 1) % R, gf - 16, 1)]
            for aa in range(2):
                g = 2 * f + aa
                ra = vAr + s * 16 + u * 8 + aa * 4
                rc = vAcc + j * 8 + aa * 4
                a(f"v_mfma_f32_16x16x32_bf16 {rr('v', rc, 4)}, {rr('v', ra, 4)}, {rr('v', rb, 4)}, {rr('v', rc, 4)}")
                if g == barg and not last:
                    vm.wait(f"g{tau+1}")
                    a("s_barrier")
                if rd:
                    a(rd[aa])
                for it in fill[g]:
                    emit(it)
        return adv(k) if loads else []

    a(f"s_mov_b32 s{sCNT}, {NS//8 - 2}")
    a(".p2align 6")
    a.lab("L_loop2")
    vm.ops = [f"g{s}" for s in range(1, D) for _ in range(8)]
    carry = adv((7 + D) % 8)
    for s in range(8):
        carry = stage(s, s, False, list(carry) + ([f"s_sub_u32 s{sCNT}, s{sCNT}, 1"] if s == 7 else []))
    a(f"s_cmp_lg_u32 s{sCNT}, 0")
    a("s_cbranch_scc1 L_loop2")
    vm.ops = [f"g{NS-16+s}" for s in range(1, D) for _ in range(8)]
    for s in range(16):
        carry = stage(s % 8, NS - 16 + s, True, carry)
    stamp(3)
    a(f"s_lshl_b32 s64, s{sMT}, 2")
    a(f"s_add_u32 s64, s64, s{sW}")
    a("s_lshl_b32 s64, s64, 11")
    a(f"s_lshl_b32 s65, s{sNT}, 18")
    a("s_add_u32 s64, s64, s65")
    a(f"s_add_u32 s64, s64, {W_OFF}")
    a("v_bfe_u32 v3, v0, 3, 1")
    a("v_bfe_u32 v4, v0, 2, 1")
    a("v_and_b32 v5, 0x33, v0")
    a("v_lshl_add_u32 v5, v3, 2, v5")
    a("v_lshlrev_b32 v5, 4, v5")
    a("v_lshl_add_u32 v2, v4, 10, v5")
    for j in range(8):
        rc = vAcc + j * 8
        rd = vBf + j * 4
        for i in range(4):
            a(f"v_cvt_pk_bf16_f32 v{rd+i}, v{rc+2*i}, v{rc+2*i+1}")
        vm.issue("w", f"buffer_store_dwordx4 {rr('v', rd, 4)}, v2, {rr('s', SRD_WS, 4)}, s64 offen offset:{(j&1)*128} sc1")
        if j & 1:
            a("s_add_u32 s64, s64, 65536")
    while xnext[0] < 64:
        for it in xload(xnext[0]):
            emit(it)
        xnext[0] += 1
    vm.wait("w")
    a("s_barrier")
    a(f"s_lshl_b32 s64, s{sNT}, 8")
    a(f"s_lshl_b32 s65, s{sMT}, 3")
    a("s_add_u32 s64, s64, s65")
    a(f"s_add_u32 s64, s64, {FW_OFF}")
    set_flag(64)
    a("s_branch L_g3")

    a.lab("L_helper")
    stamp(2)
    a(f"s_and_b32 s64, s{sXCD}, 1")
    a("s_lshl_b32 s64, s64, 3")
    a(f"s_and_b32 s65, s{sI}, 7")
    a(f"s_add_u32 s{sST}, s64, s65")
    a(f"s_lshr_b32 s64, s{sXCD}, 1")
    a("s_lshl_b32 s64, s64, 2")
    a(f"s_lshr_b32 s65, s{sI}, 3")
    a(f"s_add_u32 s{sNR}, s64, s65")
    g3_addr()
    hst = [s for s in range(hstart, NS) if hpat[(s - hstart) % len(hpat)]]
    if hst:
        a(f"s_mul_i32 s64, s{sXCD}, 28")
        a("s_lshr_b32 s64, s64, 3")
        a("s_lshl_b32 s64, s64, 8")
        a(f"s_sub_u32 s65, s{sI}, 28")
        a("s_lshl_b32 s65, s65, 2")
        a(f"s_add_u32 s65, s65, s{sW}")
        a(f"s_mul_i32 s65, s65, {4*QP}")
        a("s_add_u32 s64, s64, s65")
        a("v_bfe_u32 v3, v0, 3, 2")
        a(f"s_mov_b32 s65, {QP}")
        a("v_mul_lo_u32 v3, v3, s65")
        a("v_and_b32 v4, 7, v0")
        a("v_lshl_add_u32 v3, v4, 7, v3")
        a("v_add_u32 v3, s64, v3")
        for n, s in enumerate(hst):
            a(f"s_mov_b32 s64, {s*64*QP}")
            if n >= 16:
                a("s_waitcnt vmcnt(15)")
            a(f"buffer_load_dword v8, v3, {rr('s', SRD_V, 4)}, s64 offen")
    a("s_waitcnt vmcnt(0)")
    stamp(3)
    poll(13, 14)
    vm = Ctr(a, "vmcnt", 63)
    for n in range(64):
        if n == 48:
            a("s_waitcnt vmcnt(16)")
        for it in xload(n):
            emit(it)

    a.lab("L_g3")
    vB3, vL3, vY3, vF3, vA3, vO3 = 8, 9, 11, 32, 64, 96
    a(f"s_mul_i32 s64, s{sNR}, 7")
    a("s_add_u32 s65, s64, 6")
    a("s_lshr_b32 s64, s64, 2")
    a("s_lshr_b32 s65, s65, 2")
    a("v_lshrrev_b32 v13, 3, v0")
    a("v_add_u32 v13, s64, v13")
    a("v_min_u32 v13, s65, v13")
    a("v_and_b32 v3, 7, v0")
    a("v_lshlrev_b32 v3, 3, v3")
    a("v_lshl_add_u32 v13, v13, 8, v3")
    a(f"v_add_u32 v13, {FW_OFF}, v13")
    a(f"buffer_load_dwordx2 v[14:15], v13, {rr('s', SRD_WS, 4)}, 0 offen sc1")
    a(f"v_lshlrev_b32 v{vL3}, 4, v0")
    a(f"v_add_u32 v{vL3+1}, 0x10000, v{vL3}")
    a(f"s_mul_i32 s64, s{sNR}, {7*65536}")
    a(f"s_add_u32 s64, s64, s{sW4}")
    a(f"s_add_u32 s64, s64, {W_OFF}")
    a(f"v_add_u32 v{vB3}, s64, v{vL3}")
    a("v_and_b32 v3, 15, v0")
    a(f"s_mov_b32 s64, {QP}")
    a("v_mul_lo_u32 v3, v3, s64")
    a("v_lshrrev_b32 v4, 4, v0")
    a(f"v_lshl_add_u32 v{vY3}, v4, 4, v3")
    a(f"s_lshl_b32 s64, s{sST}, 2")
    a(f"s_add_u32 s64, s64, s{sW}")
    a(f"s_mul_i32 s66, s64, {32*QP}")
    a(f"s_mul_i32 s65, s{sNR}, 448")
    a("s_add_u32 s66, s66, s65")
    a(f"s_add_u32 s67, s66, {16*QP}")
    a("s_waitcnt vmcnt(0)")
    poll(13, 14, first_issued=True)
    stamp(4)
    vm = Ctr(a, "vmcnt", 63)
    NS3, R3 = 28, 8

    def dma3(t):
        return [(None, f"s_add_u32 m0, s{sW4}, {(t % R3)*16384}"), (None, f"s_mov_b32 s68, {t*16384}")] + \
               [(f"d{t}", f"buffer_load_dwordx4 v{vB3}, {rr('s', SRD_WS, 4)}, s68 offen offset:{p*1024} sc1 lds") for p in range(4)]

    def ds3(g):
        t, m = divmod(g, 16)
        sl = t % R3
        a(f"ds_read_b128 {rr('v', vF3+(g%8)*4, 4)}, v{vL3+(1 if sl >= 4 else 0)} offset:{(sl&3)*16384+m*1024}")

    for t in range(D3):
        for it in dma3(t):
            emit(it)
    vm.wait("d0")
    a("s_barrier")
    stamp(5)
    for g in range(LA3):
        ds3(g)
    NG = NS3 * 16

    def epi(b):
        pacc = vA3 + (b & 1) * 16
        out = []
        for aa in range(2):
            for i in range(4):
                out.append((None, f"v_cvt_pk_bf16_f32 v{vO3+aa*4+i}, v{pacc+aa*8+2*i}, v{pacc+aa*8+2*i+1}"))
            out.append(("st", f"buffer_store_dwordx4 {rr('v', vO3+aa*4, 4)}, v{vY3}, {rr('s', SRD_Y, 4)}, s{66+aa} offen offset:{b*64}{ymod}"))
        return out

    for t in range(NS3):
        b = t // 4
        pend = dma3(t + D3) if t + D3 < NS3 else []
        pos = {0: 2, 2: 1, 6: 1, 10: 1, 14: 1}
        ep = epi(b - 1) if (b > 0 and t % 4 == 0) else []
        for m in range(16):
            g = t * 16 + m
            k32, jb = (t % 4) * 8 + (m >> 1), m & 1
            a(f"s_waitcnt lgkmcnt({min(LA3-1, NG-1-g)})")
            for aa in range(2):
                rc = vA3 + (b & 1) * 16 + aa * 8 + jb * 4
                src = "0" if k32 == 0 else rr('v', rc, 4)
                a(f"v_mfma_f32_16x16x32_bf16 {rr('v', rc, 4)}, {rr('v', vF3+(g%8)*4, 4)}, {rr('a', 8*k32+4*aa, 4)}, {src}")
                if aa == 0:
                    if m == 16 - LA3 and t + 1 < NS3:
                        vm.wait(f"d{t+1}")
                        a("s_barrier")
                    if g + LA3 < NG:
                        ds3(g + LA3)
                    if ep and m >= 3:
                        emit(ep.pop(0))
                else:
                    for _ in range(pos.get(m, 0)):
                        if pend:
                            emit(pend.pop(0))
        assert not pend and not ep
    a("s_nop 7")
    for it in epi(6):
        emit(it)
    if diag:
        stamp(6)
        a("s_waitcnt vmcnt(0)")
        stamp(7)
        a("s_waitcnt lgkmcnt(0)")
        a(f"s_cmp_lg_u32 s{sW}, 0")
        a("s_cbranch_scc1 L_end")
        a("s_lshl_b32 s64, s2, 6")
        a(f"s_add_u32 s64, s64, {ST_OFF}")
        a("s_mov_b64 exec, 1")
        for k in range(8):
            a(f"v_mov_b32 v2, s{70+2*k}")
            a(f"buffer_store_dword v2, off, {rr('s', SRD_WS, 4)}, s64 offset:{4*k}")
            a("s_nop 0")
    a.lab("L_end")
    a("s_endpgm")
    return a.text(), kernel_desc(name, 512, 256, 100)


HEADER = """; QuIP weight-only GEMM chain, fused single launch:  y = (x@U) @ (dequant(qw)@V)
"""


def fused_file(**kw):
    name = "standalone__weight_only_int_quip__prompt_kernel"
    t, d = gen_fused(name, **kw)
    return (HEADER + "; @launch grid=(256,1,1) block=(256,1,1) lds=131072\n"
            '.amdgcn_target "amdgcn-amd-amdhsa--gfx950"\n.text\n' + t + '.section .rodata,"a"\n' + d)


def fused_list(**kw):
    t, d = gen_fused("fused_kernel", **kw)
    return wrap([("fused_kernel", 256, 256, 131072)], [(t, d)])


if __name__ == "__main__":
    print(fused_file())
```
